```python
import torch

def _softmax(x, axis=-1):
    return torch.softmax(x, dim=axis)
def _gelu(x):
    return torch.nn.functional.gelu(x, approximate="tanh")
def _silu(x):
    return torch.nn.functional.silu(x)
def _sigmoid(x):
    return torch.sigmoid(x)
def _layernorm(x, axis=-1, eps=1e-5):
    m = x.mean(dim=axis, keepdim=True)
    v = x.var(dim=axis, keepdim=True, unbiased=False)
    return (x - m) / torch.sqrt(v + eps)
def _scatter_add(tgt, idx, src, axis=0):
    return tgt.clone().index_add_(axis, idx, src)
def _segment_sum(src, seg, n):
    out = torch.zeros((n,) + src.shape[1:], dtype=src.dtype)
    return out.index_add_(0, seg, src)
def _pad(x, pw):
    flat = tuple(v for pair in reversed(pw) for v in pair)
    return torch.nn.functional.pad(x, flat)

kernel_name = 'interleave_layers__ssm_conv_h3__swiglu_ffn__prompt'

def setup_inputs():

    _w = (lambda a: (lambda t: t.to(torch.bfloat16) if t.is_floating_point() else t)(torch.as_tensor(a)))
    def _A_setup():
        B, S, D = 1, 2048, 640
        ks = 4
        return {
            "q": _w((lambda *s: torch.randn(*s, dtype=torch.bfloat16) * 0.05)(B, S, D)),
            "k": _w((lambda *s: torch.randn(*s, dtype=torch.bfloat16) * 1.6)(B, S, D)),
            "v": _w((lambda *s: torch.randn(*s, dtype=torch.bfloat16) * 1.6)(B, S, D)),
            "shift_k": _w((lambda *s: torch.randn(*s, dtype=torch.bfloat16) * 1.6)(D, ks) * 0.5),
            "ssm_k": _w((lambda *s: torch.randn(*s, dtype=torch.bfloat16) * 1.6)(D, S) * (1.0 / S ** 0.5)),
            "ssm_D": _w((lambda *s: torch.randn(*s, dtype=torch.bfloat16) * 1.6)(D)),
        }
    _A_in = _A_setup()

    def _B_setup():
        B, S, D, F = 1, 2048, 640, 1728
        return {
            "x": _w((lambda *s: torch.randn(*s, dtype=torch.bfloat16) * 0.05)(B, S, D)),
            "w_gate": _w((lambda *s: torch.randn(*s, dtype=torch.bfloat16) * 0.2)(D, F)),
            "w_up": _w((lambda *s: torch.randn(*s, dtype=torch.bfloat16) * 0.2)(D, F)),
            "w_down": _w((lambda *s: torch.randn(*s, dtype=torch.bfloat16) * 0.2)(F, D)),
        }
    _B_in = _B_setup()

    return {
        "A_q": _A_in["q"],
        "A_k": _A_in["k"],
        "A_v": _A_in["v"],
        "A_shift_k": _A_in["shift_k"],
        "A_ssm_k": _A_in["ssm_k"],
        "A_ssm_D": _A_in["ssm_D"],
        "B_x": _B_in["x"],
        "B_w_gate": _B_in["w_gate"],
        "B_w_up": _B_in["w_up"],
        "B_w_down": _B_in["w_down"],
    }

def reference(A_q, A_k, A_v, A_shift_k, A_ssm_k, A_ssm_D, B_x, B_w_gate, B_w_up, B_w_down):
    def _A_ref(q, k, v, shift_k, ssm_k, ssm_D):
        B, S, D = q.shape
        ks = shift_k.shape[-1]
        k_pad = _pad(k, ((0, 0), (ks - 1, 0), (0, 0)))
        k_shift = torch.zeros_like(k)
        for t in range(ks):
            k_shift = k_shift + k_pad[:, t:t + S, :] * shift_k[:, ks - 1 - t][None, None, :]
        kv = k_shift * v
        L = 2 * S
        kv_pad = _pad(kv, ((0, 0), (0, S), (0, 0)))
        kf_pad = _pad(ssm_k, ((0, 0), (0, S)))
        kv_f = (lambda x, axes=(-2,-1): torch.fft.rfft2(x.float(), dim=axes))(kv_pad[:, None, :, :], axes=(1, 2))
        kf_f = (lambda x, axes=(-2,-1): torch.fft.rfft2(x.float(), dim=axes))(kf_pad[:, None, :], axes=(1, 2))
        kf_f = (lambda x, *d: x.permute(*d))(kf_f, 1, 2, 0)
        y_f = kv_f * kf_f[None, :, :, :]
        y = (lambda x, s, axes=(-2,-1): torch.fft.irfft2(x, s=s, dim=axes).to(torch.bfloat16))(y_f, (1, L), axes=(1, 2))[:, 0, :S, :]
        y = y + kv * ssm_D[None, None, :]
        return q * y

    def _B_ref(x, w_gate, w_up, w_down):
        g = _silu(x @ w_gate)
        u = x @ w_up
        return (g * u) @ w_down

    x = A_q
    x = x + _A_ref(_layernorm(x, axis=-1), A_k, A_v, A_shift_k, A_ssm_k, A_ssm_D)
    x = x + _B_ref(_layernorm(x, axis=-1), B_w_gate, B_w_up, B_w_down)
    x = x + _A_ref(_layernorm(x, axis=-1), A_k, A_v, A_shift_k, A_ssm_k, A_ssm_D)
    x = x + _B_ref(_layernorm(x, axis=-1), B_w_gate, B_w_up, B_w_down)
    return x
```

```python
import re

REG_RE = re.compile(r'^(v|a|s)(\d+)$')
RNG_RE = re.compile(r'^(v|a|s)\[(\d+):(\d+)\]$')
TRANS = ('v_exp_', 'v_log_', 'v_rcp_', 'v_rsq_', 'v_sqrt_', 'v_sin_', 'v_cos_')
S_NODST = ('s_cmp', 's_waitcnt', 's_barrier', 's_branch', 's_cbranch', 's_nop', 's_endpgm', 's_sleep',
           's_setprio', 's_bitcmp', 's_sendmsg', 's_setreg')


def regs_of(tok):
    tok = tok.strip().lstrip('-').strip('|')
    m = REG_RE.match(tok)
    if m:
        return [(m.group(1), int(m.group(2)))]
    m = RNG_RE.match(tok)
    if m:
        return [(m.group(1), i) for i in range(int(m.group(2)), int(m.group(3)) + 1)]
    if tok == 'vcc':
        return [('s', 106), ('s', 107)]
    if tok == 'vcc_lo':
        return [('s', 106)]
    if tok == 'vcc_hi':
        return [('s', 107)]
    if tok == 'exec':
        return [('x', 0), ('x', 1)]
    if tok == 'exec_lo':
        return [('x', 0)]
    if tok == 'exec_hi':
        return [('x', 1)]
    if tok == 'm0':
        return [('m', 0)]
    return []


class I:
    __slots__ = ('txt', 'op', 'kind', 'dst', 'src', 'passes', 'wide', 'pre_wait', 'pre_nop', 'cexact')

    def __init__(self, txt):
        self.txt = txt
        t = txt.split(';')[0].strip()
        parts = t.split(None, 1)
        op = parts[0]
        self.op = op
        rest = parts[1] if len(parts) > 1 else ''
        toks = [x.strip() for x in rest.split(',')]
        mods = ''
        if toks:
            last = toks[-1].split()
            if last:
                toks[-1] = last[0]
                mods = ' '.join(last[1:])
        ops = [regs_of(x) for x in toks]
        dst, src = [], []
        self.passes = 0
        self.wide = False
        self.cexact = None
        if op.startswith('v_mfma'):
            kind = 'mfma'
            dst = ops[0]
            src = ops[1] + ops[2] + ops[3]
            self.passes = 8 if '32x32' in op else 4
            self.cexact = (tuple(ops[1] + ops[2]), tuple(ops[3]))
        elif op.startswith('v_'):
            kind = 'valu'
            if op.startswith('v_permlane') or op.startswith('v_swap'):
                dst = ops[0] + ops[1]
                src = ops[0] + ops[1]
            elif op.startswith(('v_fmac', 'v_dot2c', 'v_pk_fmac', 'v_mac', 'v_writelane')):
                dst = ops[0]
                src = sum(ops, [])
            elif op.startswith(('v_add_co', 'v_sub_co', 'v_addc_co', 'v_subb_co')):
                dst = ops[0] + ops[1]
                src = sum(ops[2:], [])
            else:
                dst = ops[0]
                src = sum(ops[1:], [])
                if op.startswith('v_cndmask') and len(ops) == 3:
                    src = src + regs_of('vcc')
        elif op.startswith('ds_'):
            kind = 'ds'
            if op.startswith('ds_read') or op.startswith('ds_bpermute') or op.startswith('ds_permute') or op.startswith('ds_swizzle'):
                dst = ops[0]
                src = sum(ops[1:], [])
                if 'd16' in op:
                    src = src + dst
            else:
                src = sum(ops, [])
        elif op.startswith('buffer_load'):
            if ' lds' in ' ' + mods:
                kind = 'dma'
                src = sum(ops, []) + [('m', 0)]
            else:
                kind = 'vload'
                dst = ops[0]
                src = sum(ops[1:], [])
        elif op.startswith('buffer_store') or op.startswith('global_store'):
            kind = 'vstore'
            src = sum(ops, [])
            self.wide = ('x3' in op) or ('x4' in op)
            self.cexact = tuple(ops[0] if op.startswith('buffer') else ops[1])
        elif op.startswith('buffer_atomic') or op.startswith('global_atomic'):
            kind = 'vstore'
            src = sum(ops, [])
        elif op.startswith('global_load'):
            kind = 'vload'
            dst = ops[0]
            src = sum(ops[1:], [])
        elif op.startswith('s_load') or op.startswith('s_memtime') or op.startswith('s_memrealtime'):
            kind = 'smem'
            dst = ops[0]
            src = sum(ops[1:], [])
        elif op.startswith('s_'):
            kind = 'salu'
            if op.startswith(S_NODST):
                src = sum(ops, [])
            else:
                dst = ops[0]
                src = sum(ops[1:], [])
                if op.startswith('s_and_saveexec') or op.startswith('s_or_saveexec'):
                    dst = dst + [('x', 0), ('x', 1)]
        else:
            raise ValueError('unknown instr ' + txt)
        self.kind = kind
        self.dst = dst
        self.src = src
        self.pre_wait = None
        self.pre_nop = 0

    def nstates(self):
        if self.op == 's_nop':
            return int(self.txt.split()[1], 0) + 1
        return 1


class Mark:
    def __init__(self, name): self.name = name


class WaitVM:
    def __init__(self, name, skip=0, extra=''):
        self.name = name; self.skip = skip; self.n = None; self.extra = extra


class Label:
    def __init__(self, name): self.name = name


class Raw:
    def __init__(self, txt): self.txt = txt


class Loop:
    def __init__(self, body, times=3): self.body = body; self.times = times


class Prog:
    def __init__(self):
        self.stack = [[]]

    @property
    def cur(self): return self.stack[-1]

    def __call__(self, s):
        if isinstance(s, (list, tuple)):
            for x in s: self(x)
            return
        if not isinstance(s, str):
            self.cur.append(s); return
        for line in s.split('\n'):
            t = line.strip()
            if not t or t.startswith(';') or t.startswith('//'):
                continue
            if t.endswith(':'):
                self.cur.append(Label(t[:-1]))
            else:
                self.cur.append(I(t))

    def mark(self, n): self.cur.append(Mark(n))
    def waitvm(self, n, skip=0, extra=''): self.cur.append(WaitVM(n, skip, extra))
    def raw(self, t): self.cur.append(Raw(t))
    def begin_loop(self): self.stack.append([])
    def end_loop(self, times=3):
        b = self.stack.pop(); self.cur.append(Loop(b, times))


def _walk(items):
    for it in items:
        if isinstance(it, Loop):
            for _ in range(it.times):
                yield from _walk(it.body)
        else:
            yield it


def _static(items):
    for it in items:
        if isinstance(it, Loop):
            yield from _static(it.body)
        else:
            yield it


def pass_waits(items):
    vm = []
    lg = []
    marks = {}
    nvm = 0
    for it in _walk(items):
        if isinstance(it, Mark):
            marks.setdefault(it.name, []).append(nvm)
            continue
        if isinstance(it, WaitVM):
            ms = marks.get(it.name, [])
            if len(ms) <= it.skip:
                continue
            pos = ms[-1 - it.skip]
            n = nvm - pos
            n = min(n, 63)
            it.n = n if it.n is None else min(it.n, n)
            vm = vm[len(vm) - n:] if n < len(vm) else vm
            if n == 0: vm = []
            continue
        if isinstance(it, (Label, Raw)):
            continue
        ins = it
        if ins.op == 's_waitcnt':
            m = re.search(r'vmcnt\((\d+)\)', ins.txt)
            if m:
                n = int(m.group(1)); vm = vm[len(vm) - n:] if 0 < n < len(vm) else ([] if n == 0 else vm)
            m = re.search(r'lgkmcnt\((\d+)\)', ins.txt)
            if m:
                n = int(m.group(1))
                if n == 0: lg = []
                elif not any(o['smem'] for o in lg): lg = lg[len(lg) - n:] if n < len(lg) else lg
            continue
        touch = set(ins.src) | set(ins.dst)
        needv = None
        for k, o in enumerate(vm):
            if o['dst'] & touch:
                n = len(vm) - 1 - k
                needv = n if needv is None else min(needv, n)
        needl = None
        for k, o in enumerate(lg):
            if o['dst'] & touch:
                n = len(lg) - 1 - k
                if any(x['smem'] for x in lg): n = 0
                needl = n if needl is None else min(needl, n)
        if needv is not None:
            needv = min(needv, 63)
            vm = vm[len(vm) - needv:] if needv > 0 else []
        if needl is not None:
            needl = min(needl, 15)
            lg = lg[len(lg) - needl:] if needl > 0 else []
        if needv is not None or needl is not None:
            pv, pl = ins.pre_wait if ins.pre_wait else (None, None)
            if needv is not None: pv = needv if pv is None else min(pv, needv)
            if needl is not None: pl = needl if pl is None else min(pl, needl)
            ins.pre_wait = (pv, pl)
        if ins.kind in ('vload', 'vstore', 'dma'):
            vm.append(dict(dst=set(ins.dst) if ins.kind == 'vload' else set()))
            nvm += 1
        elif ins.kind == 'ds':
            lg.append(dict(dst=set(ins.dst), smem=False))
        elif ins.kind == 'smem':
            lg.append(dict(dst=set(ins.dst), smem=True))


def _need(prev, cur):
    n = 0
    pd = set(prev.dst)
    cs = set(cur.src); cd = set(cur.dst)
    if prev.kind == 'valu':
        vd = {r for r in pd if r[0] in 'va'}
        sd = {r for r in pd if r[0] == 's'}
        if cur.kind == 'mfma' and vd & cs: n = max(n, 2)
        if cur.kind == 'valu':
            if cur.op.startswith('v_permlane') and vd & cs: n = max(n, 2)
            if cur.op.startswith(('v_readfirstlane', 'v_readlane')) and vd & cs: n = max(n, 1)
            if ('row_' in cur.txt or 'quad_perm' in cur.txt) and vd & cs: n = max(n, 2)
            if prev.op.startswith(TRANS) and not cur.op.startswith(TRANS) and vd & (cs | cd): n = max(n, 1)
            if sd & cs:
                n = max(n, 4 if cur.op.startswith(('v_readlane', 'v_writelane')) else 2)
            if ('op_sel' in prev.txt or 'sdwa' in prev.txt or 'dst_sel' in prev.txt) and vd & (cs | cd): n = max(n, 1)
        if cur.kind in ('vload', 'vstore', 'dma') and sd & cs: n = max(n, 5)
        if prev.op.startswith(TRANS) and cur.kind in ('vstore', 'ds') and vd & cs: n = max(n, 1)
    elif prev.kind == 'mfma':
        p = prev.passes
        if cur.kind == 'mfma':
            ab, c = cur.cexact
            if pd & set(ab): n = max(n, 8 if p == 4 else 12)
            if pd & set(c):
                if tuple(prev.dst) == tuple(c) and cur.passes == p: pass
                else: n = max(n, 6 if p == 4 else 10)
            if pd & cd and not (tuple(prev.dst) == tuple(c)):
                n = max(n, 6 if p == 4 else 10)
        elif cur.kind in ('valu', 'vload', 'vstore', 'dma', 'ds'):
            if pd & (cs | cd): n = max(n, 8 if p == 4 else 12)
            if cur.kind == 'valu' and set(prev.cexact[1]) & cd: n = max(n, 3 if p == 4 else 7)
    elif prev.kind == 'salu':
        if ('m', 0) in pd and cur.kind == 'dma': n = max(n, 1)
    elif prev.kind == 'vstore' and prev.wide:
        data = set(prev.cexact)
        if data & cd: n = max(n, 2 if cur.kind == 'valu' else 1)
    return n


def pass_hazards(items):
    hist = []
    pos = 0
    for it in _walk(items):
        if isinstance(it, Raw):
            continue
        if not isinstance(it, I):
            if isinstance(it, WaitVM) and it.n is not None: pos += 1
            continue
        if it.pre_wait: pos += 1
        need = 0
        for (p, ppos) in reversed(hist):
            d = pos - ppos - 1
            if d > 20: break
            r = _need(p, it)
            if r > d: need = max(need, r - d)
        if need > it.pre_nop:
            it.pre_nop = need
        pos += it.pre_nop
        hist.append((it, pos + it.nstates() - 1))
        pos += it.nstates()
        if len(hist) > 40: hist = hist[-30:]


def emit(items):
    out = []
    for it in _static(items):
        if isinstance(it, Label): out.append(it.name + ':')
        elif isinstance(it, Raw): out.append(it.txt)
        elif isinstance(it, Mark): pass
        elif isinstance(it, WaitVM):
            if it.n is not None: out.append(f's_waitcnt vmcnt({it.n}){" " + it.extra if it.extra else ""}')
            elif it.extra: out.append(f's_waitcnt {it.extra}')
        else:
            if it.pre_wait:
                pv, pl = it.pre_wait
                w = []
                if pv is not None: w.append(f'vmcnt({pv})')
                if pl is not None: w.append(f'lgkmcnt({pl})')
                out.append('s_waitcnt ' + ' '.join(w))
            n = it.pre_nop
            while n > 0:
                k = min(n, 16); out.append(f's_nop {k - 1}'); n -= k
            out.append(it.txt)
    return out


def finalize(prog):
    items = prog.stack[0]
    pass_waits(items)
    pass_hazards(items)
    return emit(items)


def weave(main, fill, per=2, start=0, cost=None):
    out = []
    fi = 0
    def c(x):
        if not isinstance(x, str): return 0
        op = x.split()[0]
        if op.startswith('buffer_'): return 3
        if op.startswith(TRANS): return 1.5
        return 1
    cost = cost or c
    carry = 0.0
    for k, g in enumerate(main):
        out.extend(g)
        if k < start: continue
        budget = per + carry
        while fi < len(fill):
            f = fill[fi]
            if isinstance(f, tuple) and f[0] == 'at':
                if f[1] > k: break
                fi += 1; continue
            cc = cost(f)
            if cc > budget and budget < per: break
            if budget <= 0: break
            out.append(f); budget -= cc; fi += 1
        carry = min(budget, 0.0)
    for f in fill[fi:]:
        if isinstance(f, tuple): continue
        out.append(f)
    return out
```

```python
import sys
from ab import *

KNAME = "interleave_layers__ssm_conv_h3__swiglu_ffn__prompt_kernel"
T, D, F = 2048, 640, 1728

KVT = 0x0000000
YF = 0x0300000
XF = 0x0600000
ACT = 0x0C00000
ST0 = 0x1A00000
ST2 = 0x1B00000
STX = 0x1D00000
FP = 0x1F00000
FY = 0x1F02000
FA = 0x1F10000
NONCE = 0x1F80000
OOB = 0x40000000
PROF = 0x2000000

S_WG, S_W = 2, 3
SRD_WS = 4
SRD_A = 8
SRD_B = 12
SRD_C = 16
S_NONCE = 20
S_XCD, S_SLOT, S_GRP, S_HALF = 21, 22, 23, 24
S_T0 = 26
S_STAMP = 48
P_Q, P_K, P_V, P_SK, P_HK, P_SD, P_X, P_WG, P_WU, P_WD, P_OUT, P_DBG, P_WS = [64 + 2 * i for i in range(13)]
S_SPIN = 90

def v(i, n=1): return f'v{i}' if n == 1 else f'v[{i}:{i+n-1}]'
def a(i, n=1): return f'a{i}' if n == 1 else f'a[{i}:{i+n-1}]'
def s(i, n=1): return f's{i}' if n == 1 else f's[{i}:{i+n-1}]'

class Cfg:
    stop_after = None
    prof = False
    spin_limit = 40000
    layers = 2
    lag = 2
    e2_at = 0
    gl_at = 0
    act_sc1 = 1
    g2per = 30

cfg = Cfg()
_uid = [0]
def uid(pfx):
    _uid[0] += 1
    return f'{pfx}_{_uid[0]}'

def srd(p, dst, ptr, nbytes):
    p(f's_mov_b32 {s(dst)}, {s(ptr)}')
    p(f's_mov_b32 {s(dst+1)}, {s(ptr+1)}')
    p(f's_mov_b32 {s(dst+2)}, {hex(nbytes)}')
    p(f's_mov_b32 {s(dst+3)}, 0x20000')

nstamp = [0]
def stamp(p, idx):
    if not cfg.prof: return
    p(f's_memrealtime {s(S_STAMP + 2*idx, 2)}')
    p('s_waitcnt lgkmcnt(0)')

def flush_stamps(p, n, vt=2):
    if not cfg.prof: return
    p(f's_lshl_b32 s26, s{S_WG}, 2')
    p(f's_add_u32 s26, s26, s{S_W}')
    p(f's_lshl_b32 s26, s26, 6')
    p(f's_add_u32 s26, s26, {hex(PROF)}')
    p(f'v_mov_b32 v{vt+1}, 0')
    for i in range(n):
        p(f'v_mov_b32 v{vt}, s{S_STAMP + 2*i}')
        p(f'buffer_store_dword v{vt}, v{vt+1}, s[4:7], s26 offen offset:{4*i}')
        p('s_nop 1')

def err_exit(p, code):
    p.raw(f'''s_mov_b32 s8, s{P_DBG}
s_mov_b32 s9, s{P_DBG+1}
s_mov_b32 s10, 0x100
s_mov_b32 s11, 0x20000
v_mov_b32 v2, {hex(code)}
v_mov_b32 v3, {hex(4 * (code & 63))}
s_nop 1
buffer_store_dword v2, v3, s[8:11], 0 offen
s_waitcnt vmcnt(0)
s_endpgm''')

def poll_flags(p, vt, voff, soff, code):
    l0, l1, le = uid('Lpoll'), uid('Lpok'), uid('Lperr')
    p.raw(f'''s_mov_b32 s{S_SPIN}, {cfg.spin_limit}
{l0}:
buffer_load_dword v{vt}, v{voff}, s[4:7], {soff} offen sc1
s_waitcnt vmcnt(0)
v_cmp_ne_u32 vcc, s{S_NONCE}, v{vt}
s_cmp_eq_u64 vcc, 0
s_cbranch_scc1 {l1}
s_sub_u32 s{S_SPIN}, s{S_SPIN}, 1
s_cmp_lg_u32 s{S_SPIN}, 0
s_cbranch_scc1 {l0}''')
    err_exit(p, code)
    p.raw(f'{l1}:')
    p('s_waitcnt vmcnt(0)')

def prologue(p):
    p(f'''
    s_cmp_ge_u32 s2, 256
    s_cbranch_scc1 Lend
    s_load_dwordx16 s[64:79], s[0:1], 0
    s_load_dwordx8 s[80:87], s[0:1], 64
    s_load_dwordx2 s[88:89], s[0:1], 96
    v_lshrrev_b32 v2, 6, v0
    v_and_b32 v1, 63, v0
    v_mov_b32 v3, 0
    v_readfirstlane_b32 s{S_W}, v2
    s_and_b32 s{S_XCD}, s2, 7
    s_lshr_b32 s{S_SLOT}, s2, 3
    s_lshr_b32 s{S_GRP}, s{S_XCD}, 1
    s_and_b32 s{S_HALF}, s{S_XCD}, 1
    s_waitcnt lgkmcnt(0)
    ''')
    srd(p, SRD_WS, P_WS, 0x10000000)
    p(f's_mov_b32 s26, {hex(NONCE)}')
    p(f'buffer_load_dword v4, v3, s[4:7], s26 offen sc1')

def stage_P(p):
    K0, V0, SK0 = 16, 38, 54
    KU, VU, SU, R = 64, 76, 84, 88
    O = 96
    lskip = uid('LskipP')
    p(f's_cmp_eq_u32 s{S_W}, 3')
    p(f's_cbranch_scc1 {lskip}')
    p(f's_cmp_eq_u32 s{S_W}, 2')
    p('s_cselect_b32 s27, 0, -1')
    p('s_mov_b32 exec_hi, s27')
    srd(p, SRD_A, P_K, T * D * 2)
    srd(p, SRD_B, P_V, T * D * 2)
    srd(p, SRD_C, P_SK, D * 8)
    p(f'''
    v_and_b32 v5, 7, v0
    v_lshrrev_b32 v6, 3, v0
    s_lshl_b32 s28, s{S_SLOT}, 6
    s_mul_i32 s29, s{S_XCD}, 80
    v_lshlrev_b32 v7, 3, v5
    v_add_u32 v7, s28, v7
    v_lshlrev_b32 v8, 2, v6
    v_add_u32 v8, s29, v8
    v_mul_u32_u24 v9, 1280, v7
    v_lshl_add_u32 v9, v8, 1, v9
    v_subrev_u32 v10, 3840, v9
    v_cmp_eq_u32 vcc, 0, v7
    v_mov_b32 v11, 0x80000000
    v_cndmask_b32 v10, v10, v11, vcc
    v_lshlrev_b32 v12, 3, v8
    s_mov_b32 s30, 3840
    s_mov_b32 s31, 7680
    ''')
    for i in range(3):
        p(f'buffer_load_dwordx2 {v(K0+2*i,2)}, v10, s[8:11], 0 offen offset:{1280*i}')
    for i in range(8):
        so = ['0', 's30', 's31'][i // 3]
        p(f'buffer_load_dwordx2 {v(K0+6+2*i,2)}, v9, s[8:11], {so} offen offset:{1280*(i%3)}')
        p(f'buffer_load_dwordx2 {v(V0+2*i,2)}, v9, s[12:15], {so} offen offset:{1280*(i%3)}')
    p(f'buffer_load_dwordx4 {v(SK0,4)}, v12, s[16:19], 0 offen')
    p(f'buffer_load_dwordx4 {v(SK0+4,4)}, v12, s[16:19], 0 offen offset:16')
    p(f'''
    v_lshlrev_b32 v13, 12, v8
    v_lshl_add_u32 v13, v7, 1, v13
    s_mov_b32 s32, {hex(KVT)}
    s_mov_b32 s33, {hex(KVT+4096)}
    s_mov_b32 s34, {hex(KVT+8192)}
    s_mov_b32 s35, {hex(KVT+12288)}
    s_mov_b32 s36, 0xffff0000
    ''')
    if cfg.prof == 'P':
        stamp(p, 2)
        p('s_waitcnt vmcnt(0)')
        stamp(p, 3)
    for c in range(4):
        w, hi = c >> 1, c & 1
        def unp(dst, src):
            if hi: return f'v_and_b32 v{dst}, s36, v{src}'
            return f'v_lshlrev_b32 v{dst}, 16, v{src}'
        for i in range(11): p(unp(KU + i, K0 + 2 * i + w))
        for i in range(8): p(unp(VU + i, V0 + 2 * i + w))
        p(f'v_lshlrev_b32 v{SU}, 16, v{SK0+2*c}')
        p(f'v_and_b32 v{SU+1}, s36, v{SK0+2*c}')
        p(f'v_lshlrev_b32 v{SU+2}, 16, v{SK0+2*c+1}')
        p(f'v_and_b32 v{SU+3}, s36, v{SK0+2*c+1}')
        for t in range(8): p(f'v_mul_f32 v{R+t}, v{KU+t+3}, v{SU}')
        for j in range(1, 4):
            for t in range(8): p(f'v_fmac_f32 v{R+t}, v{KU+t+3-j}, v{SU+j}')
        for t in range(8): p(f'v_mul_f32 v{R+t}, v{R+t}, v{VU+t}')
        for m in range(4):
            p(f'v_cvt_pk_bf16_f32 v{O+4*c+m}, v{R+7-2*m}, v{R+6-2*m}')
        p(f'buffer_store_dwordx4 {v(O+4*c,4)}, v13, s[4:7], s{32+c} offen sc1')
    p('s_mov_b64 exec, -1')
    if cfg.prof == 'P': stamp(p, 4)
    p(f'{lskip}:')
    p('s_waitcnt vmcnt(0)')
    p(f'v_readfirstlane_b32 s{S_NONCE}, v4')
    p(f's_add_u32 s{S_NONCE}, s{S_NONCE}, 1')
    if cfg.prof == 'P': stamp(p, 5)
    p('s_barrier')
    lf = uid('LnoflagP')
    p(f's_cmp_lg_u32 s{S_W}, 0')
    p(f's_cbranch_scc1 {lf}')
    p(f'''
    s_lshl_b32 s26, s{S_XCD}, 5
    s_add_u32 s26, s26, s{S_SLOT}
    s_lshl_b32 s26, s26, 4
    s_add_u32 s26, s26, {hex(FP)}
    v_mov_b32 v2, s{S_NONCE}
    s_mov_b64 exec, 1
    buffer_store_dword v2, v3, s[4:7], s26 offen sc1
    s_mov_b64 exec, -1
    ''')
    p(f'{lf}:')

HW = 21248
HCOPY = 4160
YBUF = 4 * HW

def conv_prep_H(p):
    X, Y, Z, C0, C2 = 64, 84, 104, 124, 144
    srd(p, SRD_A, P_HK, D * T * 2)
    p(f'''
    s_lshl_b32 s39, s38, 12
    v_lshlrev_b32 v5, 4, v1
    v_subrev_u32 v6, 32, v5
    v_add_u32 v7, 992, v5
    v_mov_b32 v8, 0
    ''')
    for i in range(5):
        if i == 0: vo, so = 6, 's39'
        else:
            vo = 7
            so = f's{40 + i}'
            p(f's_add_u32 s{40+i}, s39, {1024*(i-1)}')
        p(f'buffer_load_dwordx4 {v(X+4*i,4)}, v{vo}, s[8:11], {so} offen')
        p(f'buffer_load_dwordx4 {v(Y+4*i,4)}, v{vo}, s[8:11], {so} offen offset:4')
        p(f'buffer_load_dwordx4 {v(Z+4*i,4)}, v{vo}, s[8:11], {so} offen offset:8')
    p(f'buffer_load_dwordx2 v[10:11], v8, s[8:11], s39 offen')
    srd(p, SRD_B, P_SD, D * 2)
    p('s_lshl_b32 s40, s38, 1')
    p('buffer_load_ushort v12, v8, s[12:15], s40 offen')
    p(f'''
    s_mul_i32 s45, s{S_W}, {HW}
    v_add_u32 v9, s45, v5
    v_cmp_eq_u32 vcc, 1, v1
    ''')
    p(f'v_cndmask_b32 v{Y+3}, v{Y+3}, v10, vcc')
    p(f'v_cndmask_b32 v{Z+2}, v{Z+2}, v10, vcc')
    p(f'v_cndmask_b32 v{Z+3}, v{Z+3}, v11, vcc')
    for i in range(5):
        for k in range(4):
            p(f'v_alignbit_b32 v{C0+4*i+k}, v{Y+4*i+k}, v{X+4*i+k}, 16')
            p(f'v_alignbit_b32 v{C2+4*i+k}, v{Z+4*i+k}, v{Y+4*i+k}, 16')
        if i == 4: p('s_mov_b64 exec, 15')
        p(f'ds_write_b128 v9, {v(C0+4*i,4)} offset:{1024*i}')
        p(f'ds_write_b128 v9, {v(Y+4*i,4)} offset:{HCOPY + 1024*i}')
        p(f'ds_write_b128 v9, {v(C2+4*i,4)} offset:{2*HCOPY + 1024*i}')
        p(f'ds_write_b128 v9, {v(Z+4*i,4)} offset:{3*HCOPY + 1024*i}')
        if i == 4: p('s_mov_b64 exec, -1')
    p(f'''
    v_lshlrev_b32 v13, 3, v1
    v_add_u32 v13, s45, v13
    v_mov_b32 v14, 0
    v_mov_b32 v15, 0
    ds_write_b64 v13, v[14:15] offset:{4*HCOPY}
    v_lshlrev_b32 v12, 16, v12
    ''')

def conv_main(p):
    ACC, HF, UF = 32, [64, 96], [128, 160]
    p(f'''
    s_mul_i32 s26, s37, 3277
    s_lshr_b32 s26, s26, 16
    s_lshl_b32 s26, s26, 9
    s_add_u32 s26, s26, {hex(FP)}
    v_and_b32 v2, 31, v1
    v_lshlrev_b32 v2, 4, v2
    ''')
    poll_flags(p, 4, 2, 's26', 1)
    stamp(p, 2)
    p(f'''
    s_add_u32 s26, s45, {4*HCOPY + 512}
    s_mov_b32 m0, s26
    s_lshl_b32 s27, s38, 12
    s_add_u32 s27, s27, {hex(KVT)}
    ''')
    for i in range(4):
        p(f'buffer_load_dwordx4 v5, s[4:7], s27 offen offset:{1024*i} sc1 lds')
    p(f'''
    v_and_b32 v16, 15, v1
    v_lshrrev_b32 v17, 4, v1
    v_and_b32 v18, 3, v16
    v_mul_u32_u24 v18, {HCOPY}, v18
    v_and_b32 v19, 12, v16
    v_lshl_add_u32 v18, v19, 1, v18
    v_lshl_add_u32 v18, v17, 4, v18
    v_add_u32 v18, s45, v18
    v_add_u32 v19, 2048, v18
    v_lshlrev_b32 v20, 1, v16
    v_sub_u32 v20, v20, v17
    v_lshlrev_b32 v20, 4, v20
    s_add_u32 s26, s45, {4*HCOPY + 16*33 - 448}
    v_add_u32 v20, s26, v20
    ''')
    p(f'''
    v_lshrrev_b32 v21, 1, v17
    v_lshl_add_u32 v21, v16, 1, v21
    v_lshlrev_b32 v21, 4, v21
    v_and_b32 v26, 1, v17
    v_sub_u32 v26, 1, v26
    v_lshl_add_u32 v21, v26, 3, v21
    s_add_u32 s26, s45, {4*HCOPY + 512}
    v_add_u32 v21, s26, v21
    s_lshl_b32 s26, s{S_W}, 1
    s_add_u32 s26, s26, {YBUF}
    v_lshlrev_b32 v26, 7, v16
    v_add_u32 v26, s26, v26
    v_lshl_add_u32 v27, v17, 2, v16
    ''')
    for e in range(4):
        p(f'v_add_u32 v28, {e}, v27')
        p(f'v_and_b32 v28, 15, v28')
        p(f'v_lshl_add_u32 v{22+e}, v28, 3, v26')
    p(f'''
    v_lshrrev_b32 v26, 3, v0
    v_and_b32 v27, 7, v0
    v_and_b32 v28, 15, v26
    v_lshl_add_u32 v28, v27, 1, v28
    v_and_b32 v29, 15, v28
    v_add_u32 v28, 1, v28
    v_and_b32 v28, 15, v28
    v_lshlrev_b32 v30, 7, v26
    v_add_u32 v30, {YBUF}, v30
    v_lshl_add_u32 v29, v29, 3, v30
    v_lshl_add_u32 v28, v28, 3, v30
    v_mul_u32_u24 v30, 20480, v26
    v_lshl_add_u32 v30, v27, 4, v30
    ''')
    p('s_waitcnt vmcnt(0) lgkmcnt(0)')
    stamp(p, 3)

    def loadH(buf, q, r):
        m = 8 * q + r
        base, mm = (18, m) if m < 32 else (19, m - 32)
        return f'ds_read2_b64 {v(HF[buf]+4*q,4)}, v{base} offset0:{8*mm} offset1:{8*mm+1}'
    def loadU(buf, pp, r):
        j = 8 * pp - r
        return f'ds_read_b128 {v(UF[buf]+4*pp,4)}, v20 offset:{64*(j+7)}'

    def phase(tiles, ph, mid=None):
        nq = tiles[-1] + 1
        def loads(buf, r):
            L = []
            for q in range(nq):
                L.append(loadH(buf, q, r)); L.append(loadU(buf, q, r))
            return L
        p(loads(0, 0))
        for r in range(8):
            buf = r & 1
            mf = []
            pairs = [(i, q) for q in range(nq) for i in tiles if i >= q]
            pairs.sort(key=lambda x: max(x[1], x[0] - x[1]))
            for (i, q) in pairs:
                c = '0' if r == 0 and first_use(i, tiles, pairs, q) else v(ACC + 4 * i, 4)
                mf.append([f'v_mfma_f32_16x16x32_bf16 {v(ACC+4*i,4)}, {v(HF[buf]+4*q,4)}, {v(UF[buf]+4*(i-q),4)}, {c}'])
            fill = loads(buf ^ 1, r + 1) if r < 7 else []
            if mid and r in mid: fill = fill + mid[r]
            p(weave(mf, fill, per=1))

    def first_use(i, tiles, pairs, q):
        for (ii, qq) in pairs:
            if ii == i: return qq == q
        return False

    def epilogue(tiles, ph):
        KV, TMP = 64, 80
        for n, i in enumerate(tiles):
            p(f'ds_read_b64 {v(KV+2*n,2)}, v21 offset:{512*i}')
        for n, i in enumerate(tiles):
            k0, k1 = KV + 2 * n, KV + 2 * n + 1
            t = TMP + 8 * n
            p(f'v_and_b32 v{t+0}, 0xffff0000, v{k1}')
            p(f'v_lshlrev_b32 v{t+1}, 16, v{k1}')
            p(f'v_and_b32 v{t+2}, 0xffff0000, v{k0}')
            p(f'v_lshlrev_b32 v{t+3}, 16, v{k0}')
            for e in range(4):
                p(f'v_fma_f32 v{t+e}, v{t+e}, v12, v{ACC+4*i+e}')
            p(f'v_cvt_pk_bf16_f32 v{t+4}, v{t+0}, v{t+1}')
            p(f'v_cvt_pk_bf16_f32 v{t+5}, v{t+2}, v{t+3}')
            p(f'ds_write_b16 v22, v{t+4} offset:{2048*n}')
            p(f'ds_write_b16_d16_hi v23, v{t+4} offset:{2048*n}')
            p(f'ds_write_b16 v24, v{t+5} offset:{2048*n}')
            p(f'ds_write_b16_d16_hi v25, v{t+5} offset:{2048*n}')
        p('s_waitcnt lgkmcnt(0)')
        p('s_barrier')
        RD = 112
        for z in range(2):
            p(f'ds_read_b64 {v(RD+4*z,2)}, v29 offset:{4096*z}')
            p(f'ds_read_b64 {v(RD+4*z+2,2)}, v28 offset:{4096*z}')
        for z in range(2):
            p(f's_lshl_b32 s26, s37, 7')
            p(f's_add_u32 s26, s26, {hex(YF + ph*64*20480 + z*32*20480)}')
            p(f'buffer_store_dwordx4 {v(RD+4*z,4)}, v30, s[4:7], s26 offen sc1')
        p.mark(f'ystore{ph}')

    def publish(ph):
        L = []
        L.append(WaitVM(f'ystore{ph}'))
        L.append('s_barrier')
        return L
    def flagstore(ph):
        return [f's_lshl_b32 s26, s37, 4',
                f's_add_u32 s26, s26, {hex(FY + ph*160*16)}',
                f'v_mov_b32 v2, s{S_NONCE}',
                f'buffer_store_dword v2, v31, s[4:7], s26 offen sc1']
    p('''
    v_cmp_eq_u32 vcc, 0, v0
    v_mov_b32 v31, 0x40000000
    v_mov_b32 v2, 0
    v_cndmask_b32 v31, v31, v2, vcc
    ''')
    phase([0, 1, 2, 3], 0)
    epilogue([0, 1, 2, 3], 0)
    stamp(p, 4)
    phase([4, 5, 6, 7], 1, mid={2: publish(0) + flagstore(0)})
    epilogue([4, 5, 6, 7], 1)
    p(publish(1))
    p(flagstore(1))
    stamp(p, 5)

def allreduce(S, Q, Tm):
    return [f'v_permlane32_swap_b32 v{S}, v{Q}',
            f'v_add_f32 v{S}, v{S}, v{Q}',
            f'v_mov_b32 v{Tm}, v{S}',
            f'v_permlane16_swap_b32 v{S}, v{Tm}',
            f'v_add_f32 v{S}, v{S}, v{Tm}',
            f'v_mov_b32 v{Q}, v{S}',
            f'v_permlane32_swap_b32 v{S}, v{Q}']

def partial_stats(X, S, Q, Tm):
    L = [f'v_add_f32 v{S}, v{X}, v{X+1}', f'v_mul_f32 v{Q}, v{X}, v{X}']
    L.append(f'v_fmac_f32 v{Q}, v{X+1}, v{X+1}')
    for j in range(2, 8):
        L.append(f'v_add_f32 v{S}, v{S}, v{X+j}')
        L.append(f'v_fmac_f32 v{Q}, v{X+j}, v{X+j}')
    return L + allreduce(S, Q, Tm)

def unpack8(dst, src):
    L = []
    for k in range(4):
        L.append(f'v_lshlrev_b32 v{dst+2*k}, 16, v{src+k}')
        L.append(f'v_and_b32 v{dst+2*k+1}, 0xffff0000, v{src+k}')
    return L

def pack8(dst, src):
    return [f'v_cvt_pk_bf16_f32 v{dst+k}, v{src+2*k}, v{src+2*k+1}' for k in range(4)]

def gather_loads(E, voff, soff, srd='s[4:7]'):
    return [f'buffer_load_dwordx3 {v(E+4*i,3)}, v{voff}, {srd}, {soff} offen offset:{256*i} sc1' for i in range(5)]

def gather_check(E, T0, T1, spair):
    return [f'v_min3_u32 v{T0}, v{E+2}, v{E+6}, v{E+10}',
            f'v_max3_u32 v{T1}, v{E+2}, v{E+6}, v{E+10}',
            f'v_min3_u32 v{T0}, v{T0}, v{E+14}, v{E+18}',
            f'v_max3_u32 v{T1}, v{T1}, v{E+14}, v{E+18}',
            f'v_cmp_ne_u32 vcc, s{S_NONCE}, v{T0}',
            f'v_cmp_ne_u32 {s(spair,2)}, s{S_NONCE}, v{T1}',
            f's_or_b64 vcc, vcc, {s(spair,2)}',
            f's_cmp_eq_u64 vcc, 0']

def gather_sum(E, Tm):
    L = []
    for i in range(1, 5):
        L.append(f'v_add_f32 v{E}, v{E}, v{E+4*i}')
        L.append(f'v_add_f32 v{E+1}, v{E+1}, v{E+4*i+1}')
    return L + allreduce(E, E + 1, Tm)

INV_D = '0x3acccccd'
EPS = '0x3727c5ac'

def gather_block(p, E, voff, soff, T0, T1, code):
    l0, l1 = uid('Lg'), uid('Lgok')
    txt = [f's_mov_b32 s{S_SPIN}, {cfg.spin_limit}', f'{l0}:']
    txt += gather_loads(E, voff, soff)
    txt += ['s_waitcnt vmcnt(0)']
    chk = gather_check(E, T0, T1, 28)
    txt += chk[:4] + chk[4:6] + ['s_nop 0'] + chk[6:]
    txt += [f's_cbranch_scc1 {l1}', f's_sub_u32 s{S_SPIN}, s{S_SPIN}, 1', f's_cmp_lg_u32 s{S_SPIN}, 0', f's_cbranch_scc1 {l0}']
    p.raw('\n'.join(txt))
    err_exit(p, code)
    p.raw(f'{l1}:')
    p('s_waitcnt vmcnt(0)')

def stage_W(p, nch, ring, dma, reads, tag):
    for c in range(min(ring - 1, nch)):
        p(dma(c)); p.mark(f'{tag}{c}')
    for c in range(nch):
        p.waitvm(f'{tag}{c}', extra='lgkmcnt(0)')
        p('s_barrier')
        if c + ring - 1 < nch:
            p(dma(c + ring - 1)); p.mark(f'{tag}{c+ring-1}')
        p(reads(c))
    p('s_waitcnt lgkmcnt(0)')
    p('s_barrier')

def wdma_voff(p, dst0, dst1, rowbytes, scol):
    p(f"""
    v_lshrrev_b32 v{dst0}, 3, v1
    v_xor_b32 v{dst1}, 1, v{dst0}
    v_lshlrev_b32 v{dst0}, 5, v{dst0}
    v_lshlrev_b32 v{dst1}, 5, v{dst1}
    v_bfe_u32 v20, v1, 1, 2
    v_mul_u32_u24 v20, {rowbytes}, v20
    v_and_b32 v21, 1, v1
    v_lshl_add_u32 v20, v21, 4, v20
    v_add_u32 v20, s{scol}, v20
    v_add_u32 v{dst0}, v{dst0}, v20
    v_add_u32 v{dst1}, v{dst1}, v20
    """)

def wtr_addr(p, dst, ct_sgpr_expr):
    p(f"""
    v_lshrrev_b32 v20, 4, v1
    v_and_b32 v21, 1, v20
    v_xor_b32 v21, s{ct_sgpr_expr}, v21
    v_lshlrev_b32 v21, 7, v21
    v_lshl_add_u32 v21, v20, 10, v21
    v_bfe_u32 v20, v1, 2, 2
    v_lshl_add_u32 v21, v20, 5, v21
    v_and_b32 v20, 3, v1
    v_lshl_add_u32 v{dst}, v20, 3, v21
    """)

G2_ACTB = 55296
G2_RES = 2 * G2_ACTB
G2_DUMMY = G2_RES + 32768
class R2:
    L16, L16B, QOFF, ENTST, ENTLD, YOFF, RES, FAOFF = 2, 3, 4, 5, 6, 7, 8, 9
    RA1, RA2 = 10, 11
    YR = [0, 1, 10, 11]
    EQ = 12
    B = 16
    ACC = [32, 40]
    E = 48
    S3, Q3, FAV, T0, T1 = 51, 55, 59, 63, 67
    X = 68
    P = 76
    Y = 0
def g2_wreg(f): return a(4 * f, 4) if f < 64 else v(80 + 4 * (f - 64), 4)
def g2_wreg2(f, hh): return a(4 * f + 2 * hh, 2) if f < 64 else v(80 + 4 * (f - 64) + 2 * hh, 2)

def g2_setup(p):
    R = R2
    p(f"""
    s_sub_u32 s37, s{S_SLOT}, 21
    s_cmp_ge_u32 s37, 5
    s_cselect_b32 s38, 1, 0
    s_mul_i32 s39, s38, 5
    s_sub_u32 s39, s37, s39
    s_lshl_b32 s26, s{S_HALF}, 1
    s_add_u32 s38, s38, s26
    s_lshl_b32 s40, s39, 2
    s_add_u32 s40, s40, s{S_W}
    s_lshl_b32 s41, s38, 2
    s_add_u32 s41, s41, s{S_GRP}
    v_and_b32 v20, 15, v1
    v_lshrrev_b32 v21, 4, v1
    v_lshlrev_b32 v{R.L16}, 4, v1
    v_add_u32 v{R.L16B}, {G2_ACTB}, v{R.L16}
    v_mul_u32_u24 v{R.QOFF}, 1280, v20
    v_lshl_add_u32 v{R.QOFF}, v21, 3, v{R.QOFF}
    s_lshl_b32 s26, s40, 6
    v_add_u32 v{R.QOFF}, s26, v{R.QOFF}
    v_lshlrev_b32 v{R.ENTST}, 4, v20
    v_mov_b32 v22, {hex(OOB)}
    v_cmp_eq_u32 vcc, 0, v21
    v_mul_u32_u24 v{R.ENTLD}, 1280, v21
    v_lshl_add_u32 v{R.ENTLD}, v20, 4, v{R.ENTLD}
    v_cndmask_b32 v{R.ENTST}, v22, v{R.ENTST}, vcc
    v_lshlrev_b32 v{R.YOFF}, 7, v21
    v_lshl_add_u32 v{R.YOFF}, v20, 3, v{R.YOFF}
    s_lshl_b32 s26, s40, 10
    v_add_u32 v{R.YOFF}, s26, v{R.YOFF}
    s_lshl_b32 s26, s{S_W}, 10
    s_add_u32 s26, s26, {G2_RES}
    v_add_u32 v{R.RES}, s26, v{R.L16}
    s_mul_i32 s45, s{S_W}, 14
    s_min_u32 s45, s45, 40
    v_min_u32 v{R.FAOFF}, 13, v1
    v_add_u32 v{R.FAOFF}, s45, v{R.FAOFF}
    v_lshlrev_b32 v{R.FAOFF}, 4, v{R.FAOFF}
    s_lshl_b32 s45, s45, 10
    v_mov_b32 v{R.EQ+2}, s{S_NONCE}
    v_mov_b32 v{R.EQ+3}, s{S_NONCE}
    """)

def g2_qprep(p):
    R = R2
    srd(p, SRD_A, P_Q, T * D * 2)
    QF = 96
    p(f's_mul_i32 s26, s41, 20480')
    for i in range(8):
        p(f's_add_u32 s27, s26, {i*16*20480}')
        p(f'buffer_load_dwordx2 {v(QF+4*i,2)}, v{R.QOFF}, s[8:11], s27 offen')
        p(f'buffer_load_dwordx2 {v(QF+4*i+2,2)}, v{R.QOFF}, s[8:11], s27 offen offset:32')
    p(f's_mul_i32 s26, s41, 5120')
    p(f's_lshl_b32 s27, s40, 8')
    p(f's_add_u32 s26, s26, s27')
    p(f's_add_u32 s26, s26, {hex(ST0)}')
    for i in range(8):
        p(f'ds_write_b128 v{R.RES}, {v(QF+4*i,4)} offset:{4096*i}')
        p(unpack8(R.X, QF + 4 * i))
        p(partial_stats(R.X, R.EQ, R.EQ + 1, R.T0))
        p(f's_add_u32 s27, s26, {i*16*5120}')
        p(f'buffer_store_dwordx4 {v(R.EQ,4)}, v{R.ENTST}, s[4:7], s27 offen sc1')

def g2_stage_w(p):
    srd(p, SRD_A, P_WD, F * D * 2)
    V0, V1, TA = 24, 25, [26, 27, 28, 29]
    p(f's_lshl_b32 s26, s39, 8')
    wdma_voff(p, V0, V1, 1280, 26)
    for h in range(2):
        p(f's_lshl_b32 s27, s{S_W}, 1')
        p(f's_add_u32 s27, s27, {h}')
        wtr_addr(p, TA[h], 27)
        p(f'v_add_u32 v{TA[2+h]}, 49152, v{TA[h]}')
    p(f's_mul_i32 s42, s{S_W}, {2*5120}')
    p(f's_lshl_b32 s43, s{S_W}, 11')
    RING, KS = 6, 2
    def dma(c):
        L = []
        slot = (c % RING) * KS * 8192
        for k in range(KS):
            ks = c * KS + k
            for par in range(2):
                L.append(f's_add_u32 m0, s43, {slot + k*8192 + par*1024}')
                L.append(f's_add_u32 s44, s42, {ks*40960 + par*5120}')
                L.append(f'buffer_load_dwordx4 v{V1 if par else V0}, s[8:11], s44 offen lds')
        return L
    def reads(c):
        L = []
        slot = (c % RING) * KS * 8192
        for k in range(KS):
            ks = c * KS + k
            for h in range(2):
                for hh in range(2):
                    off = slot + k * 8192 + hh * 4096
                    base = TA[h] if off < 49152 else TA[2 + h]
                    o = off if off < 49152 else off - 49152
                    L.append(f'ds_read_b64_tr_b16 {g2_wreg2(2*ks+h, hh)}, v{base} offset:{o}')
        return L
    stage_W(p, 27, RING, dma, reads, 'w2c')

def e2_compute(Yreg, A, mu_src, out_pack):
    R = R2
    E = R.E
    mu, r, nb, t = E + 4, E + 5, E + 6, E + 8
    L = [f'v_mul_f32 v{mu}, {INV_D}, v{E}',
         f'v_mul_f32 v{t}, {INV_D}, v{E+1}',
         f'v_fma_f32 v{t}, -v{mu}, v{mu}, v{t}',
         f'v_add_f32 v{t}, {EPS}, v{t}',
         f'v_rsq_f32 v{r}, v{t}'] + unpack8(R.X, A) + [
         f'v_mul_f32 v{nb}, v{mu}, v{r}']
    for k in range(4):
        y0, y1, h0, h1 = E + 8, E + 9, E + 12, E + 13
        L += [f'v_lshlrev_b32 v{y0}, 16, v{Yreg[k]}',
              f'v_and_b32 v{y1}, 0xffff0000, v{Yreg[k]}',
              f'v_fma_f32 v{h0}, v{R.X+2*k}, v{r}, -v{nb}',
              f'v_fma_f32 v{h1}, v{R.X+2*k+1}, v{r}, -v{nb}',
              f'v_fmac_f32 v{R.X+2*k}, v{h0}, v{y0}',
              f'v_fmac_f32 v{R.X+2*k+1}, v{h1}, v{y1}']
    L += pack8(out_pack, R.X)
    return L

def g2_r0(p):
    R = R2
    YR = R.B
    for i in range(8):
        if i % 4 == 0:
            p(f"""
            s_lshl_b32 s26, s40, 7
            s_add_u32 s26, s26, {hex(FY + (i//4)*160*16)}
            v_and_b32 v{R.RA1}, 7, v1
            v_lshlrev_b32 v{R.RA1}, 4, v{R.RA1}
            """)
            poll_flags(p, R.FAV, R.RA1, 's26', 2)
        p(f"""
        s_add_u32 s30, s41, {16*i}
        s_mul_i32 s31, s30, 20480
        s_mul_i32 s32, s30, 5120
        s_add_u32 s33, s31, {hex(YF)}
        s_add_u32 s34, s32, {hex(ST0)}
        """)
        gather_block(p, R.E, R.ENTLD, 's34', R.T0, R.T1, 3)
        p(f'buffer_load_dwordx2 {v(YR,2)}, v{R.YOFF}, s[4:7], s33 offen sc1')
        p(f'buffer_load_dwordx2 {v(YR+2,2)}, v{R.YOFF}, s[4:7], s33 offen offset:512 sc1')
        p(f'ds_read_b128 {v(R.P,4)}, v{R.RES} offset:{4096*i}')
        p(gather_sum(R.E, R.T0))
        p(e2_compute([YR, YR+1, YR+2, YR+3], R.P, None, R.P))
        p(f"""
        s_lshl_b32 s35, s40, 10
        s_add_u32 s35, s35, s31
        s_add_u32 s35, s35, {hex(XF)}
        s_lshl_b32 s36, s40, 8
        s_add_u32 s36, s36, s32
        s_add_u32 s36, s36, {hex(STX)}
        """)
        p(f'buffer_store_dwordx4 {v(R.P,4)}, v{R.L16}, s[4:7], s35 offen sc1')
        p(f'ds_write_b128 v{R.RES}, {v(R.P,4)} offset:{4096*i}')
        p(partial_stats(R.X, R.EQ, R.EQ + 1, R.T0))
        p('s_waitcnt vmcnt(0)')
        p(f'buffer_store_dwordx4 {v(R.EQ,4)}, v{R.ENTST}, s[4:7], s36 offen sc1')


class G2C:
    LAG = 2
def g2_loop(p):
    R = R2
    LAG = cfg.lag
    NKS, DEL = 54, 2
    srd(p, SRD_A, P_WS, 0x10000000)
    srd(p, SRD_B, P_OUT, T * D * 2)
    p(f"""
    s_mov_b32 s42, 0
    s_mov_b32 s43, s41
    s_add_u32 s44, s45, {hex(ACT)}
    s_lshl_b32 s35, s40, 8
    s_add_u32 s36, s35, {hex(STX + 128*5120)}
    s_add_u32 s35, s35, {hex(ST2)}
    s_lshl_b32 s34, s40, 10
    s_add_u32 s34, s34, {hex(XF + 128*20480)}
    s_mov_b32 s33, {hex(OOB)}
    s_mov_b32 s47, 0
    """)
    for k in range(8): p(f'v_mov_b32 v{R.ACC[1]+k}, 0')
    def dma(buf, srdn, beta_expr, t=30):
        L = list(beta_expr) + [f's_mul_i32 s{t}, s{t}, 55296', f's_add_u32 s{t}, s{t}, s44']
        for g in range(4):
            L.append(f's_add_u32 m0, s45, {buf*G2_ACTB + 4096*g}')
            for k in range(4 if g < 3 else 2):
                L.append(f'buffer_load_dwordx4 v{R.L16}, {srdn}, s{t} offen offset:{1024*k}{" sc1" if cfg.act_sc1 else ""} lds')
            if g < 3: L.append(f's_add_u32 s{t}, s{t}, 4096')
        return L
    def faload(L0):
        return L0 + ['s_lshl_b32 s31, s31, 10', f's_add_u32 s31, s31, {hex(FA)}',
                     f'buffer_load_dword v{R.FAV}, v{R.FAOFF}, s[4:7], s31 offen sc1']
    p(f's_lshl_b32 s26, s43, 10')
    p(f's_add_u32 s26, s26, {hex(FA)}')
    poll_flags(p, R.T0, R.FAOFF, 's26', 6)
    p(dma(0, 's[4:7]', ['s_mov_b32 s30, s43']))
    p(faload(['s_add_u32 s31, s43, 16']))
    p('s_waitcnt vmcnt(0)')
    p('s_barrier')
    def base(buf): return R.L16B if buf else R.L16
    def slot(k, ks): return R.B + 4 * ((ks + 2 * k) % 4)
    def bread(k, ks): return f'ds_read_b128 {v(slot(k, ks), 4)}, v{base(k)} offset:{ks*1024}'
    def mf(k, ks, h):
        c = '0' if ks == 0 else v(R.ACC[k] + 4 * h, 4)
        return f'v_mfma_f32_16x16x32_bf16 {v(R.ACC[k]+4*h,4)}, {g2_wreg(2*ks+h)}, {v(slot(k, ks),4)}, {c}'
    for ks in range(3): p(bread(0, ks))

    def e1_out(accset):
        A = R.ACC[accset]
        L = ['s_add_u32 s26, s42, 7', 's_and_b32 s26, s26, 7', 's_lshl_b32 s26, s26, 12',
             f'v_add_u32 v{R.T1}, s26, v{R.RES}',
             f'ds_read_b128 {v(R.P,4)}, v{R.T1}',
             's_sub_u32 s27, s43, 16', 's_and_b32 s27, s27, 127',
             's_mul_i32 s31, s27, 5120', 's_add_u32 s31, s31, s35',
             's_mul_i32 s32, s27, 20480',
             's_sub_u32 s26, s42, 1',
             's_cmp_lt_u32 s26, 8',
             f's_cselect_b32 s31, s31, {hex(OOB)}',
             's_cmp_ge_u32 s42, 9',
             f's_cselect_b32 s32, s32, {hex(OOB)}']
        L += unpack8(R.X, R.P)
        L += [f'v_add_f32 v{R.X+j}, v{R.X+j}, v{A+j}' for j in range(8)]
        L += pack8(R.P, R.X)
        L += [f'ds_write_b128 v{R.T1}, {v(R.P,4)}']
        L += [f'buffer_store_dwordx2 {v(R.P,2)}, v{R.QOFF}, s[12:15], s32 offen',
              f'buffer_store_dwordx2 {v(R.P+2,2)}, v{R.QOFF}, s[12:15], s32 offen offset:32']
        L += partial_stats(R.X, R.EQ, R.EQ + 1, R.T0)
        L += [f'buffer_store_dwordx4 {v(R.EQ,4)}, v{R.ENTST}, s[4:7], s31 offen sc1']
        return L

    def e3():
        return [WaitVM('x3st', skip=0),
                f'v_mov_b32 v{R.EQ}, v{R.S3}', f'v_mov_b32 v{R.EQ+1}, v{R.Q3}',
                f'buffer_store_dwordx4 {v(R.EQ,4)}, v{R.ENTST}, s[4:7], s29 offen sc1']

    def e2(k):
        L = gather_check(R.E, R.T0, R.T1, 28)
        L += ['s_cselect_b32 s26, 0, s47',
              's_cmp_lg_u32 s26, 0',
              f's_cbranch_scc1 Lg2_e2late{k}',
              f'Lg2_e2ret{k}:']
        L += [WaitVM('x3st', skip=0),
              f'v_mov_b32 v{R.EQ}, v{R.S3}', f'v_mov_b32 v{R.EQ+1}, v{R.Q3}',
              f'buffer_store_dwordx4 {v(R.EQ,4)}, v{R.ENTST}, s[4:7], s25 offen sc1']
        L += gather_sum(R.E, R.T0)
        L += [f's_sub_u32 s26, s42, {LAG}', 's_and_b32 s27, s26, 7', 's_lshl_b32 s27, s27, 12',
              's_cmp_lg_u32 s47, 0', 's_cselect_b32 s27, s27, 32768',
              f'v_add_u32 v{R.T1}, s27, v{R.RES}',
              f'ds_read_b128 {v(R.P,4)}, v{R.T1}',
              f's_sub_u32 s27, s43, {16*LAG}', 's_and_b32 s27, s27, 127',
              's_mul_i32 s31, s27, 20480', 's_add_u32 s31, s31, s34',
              's_mul_i32 s25, s27, 5120', 's_add_u32 s25, s25, s36',
              's_cmp_lg_u32 s47, 0',
              f's_cselect_b32 s31, s31, {hex(OOB)}',
              f's_cselect_b32 s25, s25, {hex(OOB)}']
        L += e2_compute(R.YR, R.P, None, R.P)
        L += [f'buffer_store_dwordx4 {v(R.P,4)}, v{R.L16}, s[4:7], s31 offen sc1', Mark('x3st'),
              f'ds_write_b128 v{R.T1}, {v(R.P,4)}']
        L += partial_stats(R.X, R.S3, R.Q3, R.T0)
        return L

    def gloads():
        L = [f's_sub_u32 s26, s42, {LAG - 1}',
             's_cmp_lt_u32 s26, 8', 's_cselect_b32 s47, 1, 0',
             f's_sub_u32 s27, s43, {16*(LAG-1)}', 's_and_b32 s27, s27, 127',
             's_mul_i32 s33, s27, 5120', f's_add_u32 s33, s33, {hex(ST2)}',
             's_mul_i32 s31, s27, 20480', f's_add_u32 s31, s31, {hex(YF)}',
             's_cmp_lg_u32 s47, 0',
             f's_cselect_b32 s33, s33, {hex(OOB)}',
             f's_cselect_b32 s31, s31, {hex(OOB)}']
        L += gather_loads(R.E, R.ENTLD, 's33')
        L += [f'buffer_load_dwordx2 {v(R.YR[0],2)}, v{R.YOFF}, s[4:7], s31 offen',
              f'buffer_load_dwordx2 {v(R.YR[2],2)}, v{R.YOFF}, s[4:7], s31 offen offset:512']
        return L

    p(f's_mov_b32 s25, {hex(OOB)}')
    p.begin_loop()
    p('Lg2_loop:')
    for k in range(2):
        nk = k ^ 1
        groups = []
        for ks in range(NKS):
            if ks == NKS - DEL:
                groups.append(['s_cmp_lg_u32 s46, 0', f's_cbranch_scc1 Lg2_falate{k}', f'Lg2_faret{k}:',
                               WaitVM('g2dma', skip=0, extra='lgkmcnt(0)'), 's_barrier', bread(nk, 0), bread(nk, 1)])
            g0 = [mf(k, ks, 0)]
            if ks + 3 < NKS: g0.append(bread(k, ks + 3))
            g1 = [mf(k, ks, 1)]
            if ks == NKS - DEL: g1.append(bread(nk, 2))
            groups.append(g0); groups.append(g1)
        fill = []
        fill += [f'v_cmp_ne_u32 vcc, s{S_NONCE}, v{R.FAV}',
                 's_cmp_eq_u64 vcc, 0',
                 's_cselect_b32 s27, 1, 0',
                 's_cmp_lt_u32 s42, 15',
                 's_cselect_b32 s26, 1, 0',
                 's_andn2_b32 s46, s26, s27',
                 's_and_b32 s26, s26, s27',
                 's_cmp_lg_u32 s26, 0',
                 's_cselect_b32 s10, 0x10000000, 0']
        fill += dma(nk, 's[8:11]', ['s_add_u32 s30, s43, 16']) + [Mark('g2dma')]
        fill += faload(['s_add_u32 s31, s43, 32', 's_min_u32 s31, s31, 255'])
        fill += e1_out(nk)
        if cfg.e2_at: fill += [('at', cfg.e2_at)]
        fill += e2(k)
        if cfg.gl_at: fill += [('at', cfg.gl_at)]
        fill += gloads()
        body = weave(groups, fill, per=cfg.g2per / 10.0)
        p(body)
        p('s_add_u32 s42, s42, 1')
        p('s_add_u32 s43, s43, 16')
    p('s_cmp_lt_u32 s42, 16')
    p('s_cbranch_scc1 Lg2_loop')
    p.end_loop(times=3)
    p('s_nop 7')
    p(e1_out(1))
    p('s_waitcnt vmcnt(0)')
    p('s_branch Lg2_done')
    for k in range(2):
        q = Prog()
        q(f'Lg2_e2late{k}:')
        gather_block(q, R.E, R.ENTLD, 's33', R.T0, R.T1, 7)
        q(f's_branch Lg2_e2ret{k}')
        p.raw('\n'.join(finalize(q)))
        q = Prog()
        q(f'Lg2_falate{k}:')
        q('s_add_u32 s92, s43, 16')
        q('s_lshl_b32 s92, s92, 10')
        q(f's_add_u32 s92, s92, {hex(FA)}')
        poll_flags(q, R.FAV, R.FAOFF, 's92', 8)
        q(dma(k ^ 1, 's[4:7]', ['s_add_u32 s93, s43, 16'], t=93))
        q('s_add_u32 s92, s43, 32')
        q('s_min_u32 s92, s92, 255')
        q('s_lshl_b32 s92, s92, 10')
        q(f's_add_u32 s92, s92, {hex(FA)}')
        q(f'buffer_load_dword v{R.FAV}, v{R.FAOFF}, s[4:7], s92 offen sc1')
        q('s_waitcnt vmcnt(0)')
        q(f's_branch Lg2_faret{k}')
        p.raw('\n'.join(finalize(q)))
    p('Lg2_done:')

class R1:
    L16, ENTLD, STOFF, FLOFF = 2, 3, 4, 5
    T0, T1 = 6, 7
    B = 8
    ACC = [24, 40, 56]
    CS = 72
    ST = [88, 92, 96]
    E = 100
    EP = 120
    O = 152
def g1_wreg(f): return a(4 * f, 4) if f < 64 else v(192 + 4 * (f - 64), 4)
def g1_wreg2(f, hh): return a(4 * f + 2 * hh, 2) if f < 64 else v(192 + 4 * (f - 64) + 2 * hh, 2)
XBUF = 20480
S_BETA = [45, 46, 47]

def g1_setup(p):
    p(f"""
    s_mul_i32 s26, s{S_SLOT}, 37
    s_lshr_b32 s37, s26, 8
    s_mul_i32 s26, s37, 7
    s_sub_u32 s38, s{S_SLOT}, s26
    s_mul_i32 s26, s{S_HALF}, 7
    s_add_u32 s38, s38, s26
    s_lshl_b32 s39, s38, 2
    s_add_u32 s39, s39, s{S_W}
    s_cmp_eq_u32 s37, 2
    s_cselect_b32 s40, 10, 11
    s_lshl_b32 s41, s37, 2
    s_add_u32 s41, s41, s{S_GRP}
    """)

def g1_stage_w(p):
    srd(p, SRD_A, P_WG, D * F * 2)
    srd(p, SRD_B, P_WU, D * F * 2)
    V0, V1, TA = 24, 25, [26, 27, 28, 29]
    p(f's_lshl_b32 s26, s38, 8')
    wdma_voff(p, V0, V1, 3456, 26)
    for h in range(2):
        p(f's_lshl_b32 s27, s{S_W}, 1')
        p(f's_add_u32 s27, s27, {h}')
        wtr_addr(p, TA[h], 27)
        p(f'v_add_u32 v{TA[2+h]}, 65536, v{TA[h]}') if False else p(f'v_add_u32 v{TA[2+h]}, 0x10000, v{TA[h]}')
    p(f's_mul_i32 s30, s{S_W}, {2*13824}')
    p(f's_lshl_b32 s31, s{S_W}, 11')
    RING = 8
    def dma(c):
        L = []
        slot = (c % RING) * 16384
        for mat in range(2):
            for par in range(2):
                L.append(f's_add_u32 m0, s31, {slot + mat*8192 + par*1024}')
                L.append(f's_add_u32 s35, s30, {c*110592 + par*13824}')
                L.append(f'buffer_load_dwordx4 v{V1 if par else V0}, s[{8+4*mat}:{11+4*mat}], s35 offen lds')
        return L
    def reads(c):
        L = []
        slot = (c % RING) * 16384
        for mat in range(2):
            for h in range(2):
                for hh in range(2):
                    off = slot + mat * 8192 + hh * 4096
                    base = TA[h] if off < 65536 else TA[2 + h]
                    o = off if off < 65536 else off - 65536
                    L.append(f'ds_read_b64_tr_b16 {g1_wreg2(4*c + 2*mat + h, hh)}, v{base} offset:{o}')
        return L
    stage_W(p, 20, RING, dma, reads, 'w1c')
    R = R1
    for k in range(4): p(f'v_mov_b32 v{R.B+k}, 0x3f803f80')
    for ks in range(20):
        for t in range(4):
            c = '0' if ks == 0 else v(R.CS + 4 * t, 4)
            p(f'v_mfma_f32_16x16x32_bf16 {v(R.CS+4*t,4)}, {g1_wreg(4*ks+t)}, {v(R.B,4)}, {c}')

def g1_stats(slot):
    R = R1
    E = R.E; S = R.ST[slot]
    return gather_sum(E, R.T0) + [
        f'v_mul_f32 v{E+4}, {INV_D}, v{E}',
        f'v_mul_f32 v{E+5}, {INV_D}, v{E+1}',
        f'v_fma_f32 v{E+5}, -v{E+4}, v{E+4}, v{E+5}',
        f'v_add_f32 v{S+2}, {EPS}, v{E+5}',
        f'v_rsq_f32 v{E+6}, v{S+2}',
        f'v_sub_f32 v{S}, 0, v{E+4}',
        f'v_mul_f32 v{S+1}, 0xbfb8aa3b, v{E+6}']

def g1_xdma(slot, srdn):
    b = S_BETA[slot]
    return [f's_mul_i32 s30, s{b}, 20480',
            f's_mul_i32 s31, s{S_W}, 5120',
            f's_add_u32 s30, s30, s31',
            f's_add_u32 s30, s30, {hex(XF)}',
            f's_add_u32 m0, s31, {slot*XBUF}',
            f's_add_u32 s35, s30, 4096'] + \
           [f'buffer_load_dwordx4 v{R1.L16}, {srdn}, s30 offen offset:{1024*i} sc1 lds' for i in range(4)] + \
           [f's_add_u32 m0, s31, {slot*XBUF + 4096}', 's_nop 0',
            f'buffer_load_dwordx4 v{R1.L16}, {srdn}, s35 offen sc1 lds']

def g1_next_beta(slot):
    b = S_BETA[slot]
    return [f's_mov_b32 s{b}, s42',
            's_add_u32 s42, s42, 12',
            's_sub_u32 s43, s43, 1',
            's_cmp_eq_u32 s43, 0',
            's_cselect_b32 s42, s36, s42',
            's_cselect_b32 s43, s40, s43']

def g1_epilogue(setk, stk):
    R = R1
    A = R.ACC[setk]; S = R.ST[stk]
    L = []
    tmp = R.EP
    for h in range(2):
        for e in range(4):
            j = 4 * h + e
            g, u = tmp + j, tmp + 8 + j
            L.append(f'v_fma_f32 v{g}, v{S}, v{R.CS+4*h+e}, v{A+4*h+e}')
            L.append(f'v_fma_f32 v{u}, v{S}, v{R.CS+8+4*h+e}, v{A+8+4*h+e}')
    for j in range(8): L.append(f'v_mul_f32 v{tmp+16+j}, v{tmp+j}, v{S+1}')
    for j in range(8): L.append(f'v_exp_f32 v{tmp+16+j}, v{tmp+16+j}')
    for j in range(8): L.append(f'v_mul_f32 v{tmp+j}, v{tmp+j}, v{tmp+8+j}')
    for j in range(8): L.append(f'v_fma_f32 v{tmp+16+j}, v{tmp+16+j}, v{S+2}, v{S+2}')
    for j in range(8): L.append(f'v_rcp_f32 v{tmp+16+j}, v{tmp+16+j}')
    for j in range(8): L.append(f'v_mul_f32 v{tmp+j}, v{tmp+j}, v{tmp+16+j}')
    L += pack8(R.O, tmp)
    return L

def g1_actstore(slot):
    b = S_BETA[slot]
    return [f's_mul_i32 s30, s{b}, 55296',
            f's_lshl_b32 s31, s39, 10',
            f's_add_u32 s30, s30, s31',
            f's_add_u32 s30, s30, {hex(ACT)}',
            f'buffer_store_dwordx4 {v(R1.O,4)}, v{R1.STOFF}, s[4:7], s30 offen sc1',
            f's_lshl_b32 s33, s{b}, 10',
            f's_lshl_b32 s31, s39, 4',
            f's_add_u32 s33, s33, s31',
            f's_add_u32 s33, s33, {hex(FA)}']

def g1_flagstore():
    return [f'v_mov_b32 v{R1.T1}, s{S_NONCE}',
            f'buffer_store_dword v{R1.T1}, v{R1.FLOFF}, s[4:7], s32 offen sc1']

def g1_loop(p):
    R = R1
    p(f"""
    v_lshlrev_b32 v{R.L16}, 4, v1
    v_and_b32 v20, 15, v1
    v_lshrrev_b32 v21, 4, v1
    v_mul_u32_u24 v{R.ENTLD}, 1280, v21
    v_lshl_add_u32 v{R.ENTLD}, v20, 4, v{R.ENTLD}
    s_cmp_lt_u32 s39, 54
    s_cselect_b32 s26, 0, {hex(OOB)}
    v_add_u32 v{R.STOFF}, s26, v{R.L16}
    v_mov_b32 v22, {hex(OOB)}
    v_mov_b32 v23, s26
    v_cmp_eq_u32 vcc, 0, v1
    s_mov_b32 s42, s41
    s_mov_b32 s43, s40
    s_add_u32 s36, s41, 128
    s_lshl_b32 s44, s40, {cfg.layers-1}
    v_cndmask_b32 v{R.FLOFF}, v22, v23, vcc
    s_mov_b32 s32, {hex(OOB)}
    s_mov_b32 s33, {hex(OOB)}
    """)
    srd(p, SRD_A, P_WS, 0x10000000)
    for k in range(2):
        p(g1_next_beta(k))
        p(f's_mul_i32 s30, s{S_BETA[k]}, 5120')
        p(f's_add_u32 s30, s30, {hex(STX)}')
        gather_block(p, R.E, R.ENTLD, 's30', R.T0, R.T1, 4)
        p(g1_stats(k))
        p(g1_xdma(k, 's[4:7]'))
    p.mark('g1end'); p.mark('g1end')
    p('s_sub_u32 s44, s44, 2')
    p(f's_lshl_b32 s34, s40, {cfg.layers-1}')
    p(f's_mov_b32 s{S_BETA[2]}, 0x4000')
    p('s_waitcnt vmcnt(0)')
    p('s_barrier')
    NKS = 20
    def bread(buf, ks): return f'ds_read_b128 {v(R.B+4*(ks%4),4)}, v{R.L16} offset:{buf*XBUF + ks*1024}'
    def mf(setk, ks, t):
        c = '0' if ks == 0 else v(R.ACC[setk] + 4 * t, 4)
        return f'v_mfma_f32_16x16x32_bf16 {v(R.ACC[setk]+4*t,4)}, {g1_wreg(4*ks+t)}, {v(R.B+4*(ks%4),4)}, {c}'
    for ks in range(3): p(bread(0, ks))
    DEL = 2
    p.begin_loop()
    p('Lg1_loop:')
    for k in range(3):
        prev, nxt2 = (k + 2) % 3, (k + 2) % 3
        nx = (k + 1) % 3
        main = []
        for ks in range(NKS):
            g = []
            if ks + 3 < NKS: rd = [bread(k, ks + 3)]
            else: rd = None
            for t in range(4):
                g.append(mf(k, ks, t))
            main.append((ks, g, rd))
        groups = []
        for (ks, g, rd) in main:
            if ks == NKS - DEL:
                groups.append([WaitVM('g1end', skip=0), 's_barrier'])
            for t in range(4):
                gg = [g[t]]
                if t == 0 and rd: gg = gg + rd
                if t == 0 and ks >= NKS - 3 and ks >= NKS - DEL - 1:
                    pass
                groups.append(gg)
            if ks >= NKS - DEL:
                pass
        out = []
        gi = 0
        for idx, gg in enumerate(groups):
            out.append(gg)
        bi = [i for i, gg in enumerate(out) if any(isinstance(x, WaitVM) for x in gg)][0]
        out[bi] = out[bi] + [bread(nx, 0), bread(nx, 1)]
        out[bi + 4] = out[bi + 4] + [bread(nx, 2)]
        fill = []
        fill += g1_next_beta(nxt2)[0:0]
        fill += [f's_mov_b32 s29, s42', 's_mul_i32 s30, s29, 5120', f's_add_u32 s30, s30, {hex(STX)}']
        fill += gather_loads(R.E, R.ENTLD, 's30')
        fill += [('at', 2)]
        fill += g1_epilogue(prev, prev)[:40]
        fill += [WaitVM('g1act', skip=0)] + g1_flagstore()
        fill += g1_epilogue(prev, prev)[40:]
        fill += g1_actstore(prev) + [Mark('g1act'), 's_mov_b32 s32, s33']
        fill += [('at', 50)]
        fill += gather_check(R.E, R.T0, R.T1, 28)
        fill += ['s_cselect_b32 s27, 1, 0',
                 's_cmp_gt_u32 s44, 0',
                 's_cselect_b32 s26, 1, 0',
                 's_and_b32 s25, s26, s27',
                 's_cmp_eq_u32 s25, 1',
                 f's_cselect_b32 s10, 0x10000000, 0',
                 's_andn2_b32 s25, s26, s27']
        fill += g1_next_beta(nxt2)
        fill += g1_stats(nxt2)
        fill += g1_xdma(nxt2, 's[8:11]')
        body = weave(out, fill, per=2)
        p(body)
        lk, lr = f'Lg1_late{k}', f'Lg1_ret{k}'
        p('s_cmp_lg_u32 s25, 0')
        p(f's_cbranch_scc1 {lk}')
        p(f'{lr}:')
        p.mark('g1end')
        p('s_sub_u32 s44, s44, 1') if False else None
        p('s_max_u32 s44, s44, 1')
        p('s_sub_u32 s44, s44, 1')
        p('s_sub_u32 s34, s34, 1')
        p('s_cmp_eq_u32 s34, 0')
        p(f's_cbranch_scc1 Lg1_tail{k}')
    p('s_branch Lg1_loop')
    p.end_loop(times=3)
    for k in range(3):
        nxt2 = (k + 2) % 3
        q = Prog()
        q(f'Lg1_late{k}:')
        q(f's_mul_i32 s30, s{S_BETA[nxt2]}, 5120')
        q(f's_add_u32 s30, s30, {hex(STX)}')
        gather_block(q, R.E, R.ENTLD, 's30', R.T0, R.T1, 5)
        q(g1_stats(nxt2))
        q(g1_xdma(nxt2, 's[4:7]'))
        q(f's_branch Lg1_ret{k}')
        p.raw('\n'.join(finalize(q)))
    for k in range(3):
        q = Prog()
        q(f'Lg1_tail{k}:')
        q('s_nop 7')
        q(g1_epilogue(k, k))
        q('s_waitcnt vmcnt(0)')
        q(g1_flagstore())
        q(g1_actstore(k))
        q('s_mov_b32 s32, s33')
        q('s_waitcnt vmcnt(0)')
        q(g1_flagstore())
        q('s_branch Lg1_done')
        p.raw('\n'.join(finalize(q)))
    p('Lg1_done:')

def build():
    p = Prog()
    prologue(p)
    stamp(p, 0)
    stage_P(p)
    stamp(p, 1)
    if cfg.stop_after == 'P':
        flush_stamps(p, 6)
        p('s_branch Lfin')
    p(f'''
    s_cmp_ge_u32 s{S_SLOT}, 21
    s_cbranch_scc1 Lrole_g2
    s_mul_i32 s37, s{S_XCD}, 21
    s_add_u32 s37, s37, s{S_SLOT}
    s_cmp_ge_u32 s37, 160
    s_cbranch_scc1 Lconv_done
    s_lshl_b32 s38, s37, 2
    s_add_u32 s38, s38, s{S_W}
    ''')
    conv_prep_H(p)
    conv_main(p)
    p('Lconv_done:')
    if cfg.stop_after not in ('conv', 'front'):
        p('s_barrier')
        g1_setup(p)
        g1_stage_w(p)
        stamp(p, 6)
        g1_loop(p)
        stamp(p, 7)
    flush_stamps(p, 8)
    p('s_branch Lfin')
    p('Lrole_g2:')
    p(f's_cmp_eq_u32 s{S_SLOT}, 31')
    p('s_cbranch_scc1 Lfin')
    g2_setup(p)
    g2_qprep(p)
    stamp(p, 2)
    if cfg.stop_after != 'front_now':
        g2_stage_w(p)
    stamp(p, 3)
    g2_r0(p)
    stamp(p, 4)
    if cfg.stop_after not in ('front', 'g1'):
        g2_loop(p)
    stamp(p, 5)
    flush_stamps(p, 6)
    p('Lfin:')
    p(f'''
    s_cmp_lg_u32 s2, 0
    s_cbranch_scc1 Lend
    s_cmp_lg_u32 s{S_W}, 0
    s_cbranch_scc1 Lend
    s_mov_b32 s26, {hex(NONCE)}
    v_mov_b32 v2, s{S_NONCE}
    v_mov_b32 v3, 0
    s_mov_b64 exec, 1
    buffer_store_dword v2, v3, s[4:7], s26 offen sc1
    ''')
    p('Lend:')
    lines = finalize(p)
    return lines

HDR = open('interleave_layers__ssm_conv_h3__swiglu_ffn__prompt.s.ref').read().split('; Override')[0] \
    if __import__('os').path.exists('interleave_layers__ssm_conv_h3__swiglu_ffn__prompt.s.ref') else ''

def wrap(lines):
    body = '\n'.join(lines)
    return f'''{HDR}; @launch grid=(256,1,1) block=(256,1,1) lds=163840
.amdgcn_target "amdgcn-amd-amdhsa--gfx950"
.text
.globl {KNAME}
.p2align 8
.type {KNAME},@function
{KNAME}:
{body}
s_endpgm
.section .rodata,"a"
.p2align 6
.amdhsa_kernel {KNAME}
  .amdhsa_next_free_vgpr 512
  .amdhsa_next_free_sgpr 102
  .amdhsa_accum_offset 256
  .amdhsa_group_segment_fixed_size 0
  .amdhsa_kernarg_size 104
  .amdhsa_user_sgpr_count 2
  .amdhsa_user_sgpr_kernarg_segment_ptr 1
  .amdhsa_system_sgpr_workgroup_id_x 1
.end_amdhsa_kernel
'''

if __name__ == '__main__':
    out = sys.argv[1]
    for arg in sys.argv[2:]:
        k, val = arg.split('=')
        setattr(cfg, k, {'True': True, 'False': False, 'None': None}.get(val, int(val) if val.isdigit() else val))
    open(out, 'w').write(wrap(build()))
```

```python
import re

REG_RE = re.compile(r'^(v|a|s)(\d+)$')
RNG_RE = re.compile(r'^(v|a|s)\[(\d+):(\d+)\]$')
TRANS = ('v_exp_', 'v_log_', 'v_rcp_', 'v_rsq_', 'v_sqrt_', 'v_sin_', 'v_cos_')
S_NODST = ('s_cmp', 's_waitcnt', 's_barrier', 's_branch', 's_cbranch', 's_nop', 's_endpgm', 's_sleep',
           's_setprio', 's_bitcmp', 's_sendmsg', 's_setreg')


def regs_of(tok):
    tok = tok.strip().lstrip('-').strip('|')
    m = REG_RE.match(tok)
    if m:
        return [(m.group(1), int(m.group(2)))]
    m = RNG_RE.match(tok)
    if m:
        return [(m.group(1), i) for i in range(int(m.group(2)), int(m.group(3)) + 1)]
    if tok == 'vcc':
        return [('s', 106), ('s', 107)]
    if tok == 'vcc_lo':
        return [('s', 106)]
    if tok == 'vcc_hi':
        return [('s', 107)]
    if tok == 'exec':
        return [('x', 0), ('x', 1)]
    if tok == 'exec_lo':
        return [('x', 0)]
    if tok == 'exec_hi':
        return [('x', 1)]
    if tok == 'm0':
        return [('m', 0)]
    return []


class I:
    __slots__ = ('txt', 'op', 'kind', 'dst', 'src', 'passes', 'wide', 'pre_wait', 'pre_nop', 'cexact')

    def __init__(self, txt):
        self.txt = txt
        t = txt.split(';')[0].strip()
        parts = t.split(None, 1)
        op = parts[0]
        self.op = op
        rest = parts[1] if len(parts) > 1 else ''
        toks = [x.strip() for x in rest.split(',')]
        mods = ''
        if toks:
            last = toks[-1].split()
            if last:
                toks[-1] = last[0]
                mods = ' '.join(last[1:])
        ops = [regs_of(x) for x in toks]
        dst, src = [], []
        self.passes = 0
        self.wide = False
        self.cexact = None
        if op.startswith('v_mfma'):
            kind = 'mfma'
            dst = ops[0]
            src = ops[1] + ops[2] + ops[3]
            self.passes = 8 if '32x32' in op else 4
            self.cexact = (tuple(ops[1] + ops[2]), tuple(ops[3]))
        elif op.startswith('v_'):
            kind = 'valu'
            if op.startswith('v_permlane') or op.startswith('v_swap'):
                dst = ops[0] + ops[1]
                src = ops[0] + ops[1]
            elif op.startswith(('v_fmac', 'v_dot2c', 'v_pk_fmac', 'v_mac', 'v_writelane')):
                dst = ops[0]
                src = sum(ops, [])
            elif op.startswith(('v_add_co', 'v_sub_co', 'v_addc_co', 'v_subb_co')):
                dst = ops[0] + ops[1]
                src = sum(ops[2:], [])
            else:
                dst = ops[0]
                src = sum(ops[1:], [])
                if op.startswith('v_cndmask') and len(ops) == 3:
                    src = src + regs_of('vcc')
        elif op.startswith('ds_'):
            kind = 'ds'
            if op.startswith('ds_read') or op.startswith('ds_bpermute') or op.startswith('ds_permute') or op.startswith('ds_swizzle'):
                dst = ops[0]
                src = sum(ops[1:], [])
                if 'd16' in op:
                    src = src + dst
            else:
                src = sum(ops, [])
        elif op.startswith('buffer_load'):
            if ' lds' in ' ' + mods:
                kind = 'dma'
                src = sum(ops, []) + [('m', 0)]
            else:
                kind = 'vload'
                dst = ops[0]
                src = sum(ops[1:], [])
        elif op.startswith('buffer_store') or op.startswith('global_store'):
            kind = 'vstore'
            src = sum(ops, [])
            self.wide = ('x3' in op) or ('x4' in op)
            self.cexact = tuple(ops[0] if op.startswith('buffer') else ops[1])
        elif op.startswith('buffer_atomic') or op.startswith('global_atomic'):
            kind = 'vstore'
            src = sum(ops, [])
        elif op.startswith('global_load'):
            kind = 'vload'
            dst = ops[0]
            src = sum(ops[1:], [])
        elif op.startswith('s_load') or op.startswith('s_memtime') or op.startswith('s_memrealtime'):
            kind = 'smem'
            dst = ops[0]
            src = sum(ops[1:], [])
        elif op.startswith('s_'):
            kind = 'salu'
            if op.startswith(S_NODST):
                src = sum(ops, [])
            else:
                dst = ops[0]
                src = sum(ops[1:], [])
                if op.startswith('s_and_saveexec') or op.startswith('s_or_saveexec'):
                    dst = dst + [('x', 0), ('x', 1)]
        else:
            raise ValueError('unknown instr ' + txt)
        self.kind = kind
        self.dst = dst
        self.src = src
        self.pre_wait = None
        self.pre_nop = 0

    def nstates(self):
        if self.op == 's_nop':
            return int(self.txt.split()[1], 0) + 1
        return 1


class Mark:
    def __init__(self, name): self.name = name


class WaitVM:
    def __init__(self, name, skip=0, extra=''):
        self.name = name; self.skip = skip; self.n = None; self.extra = extra


class Touch:
    def __init__(self, *regs):
        self.src = sum([regs_of(r) for r in regs], [])
        self.dst = []
        self.pre_wait = None
        self.kind = 'touch'; self.op = 'touch'; self.txt = 'touch'


class Label:
    def __init__(self, name): self.name = name


class Raw:
    def __init__(self, txt): self.txt = txt


class Loop:
    def __init__(self, body, times=3): self.body = body; self.times = times


class Prog:
    def __init__(self):
        self.stack = [[]]

    @property
    def cur(self): return self.stack[-1]

    def __call__(self, s):
        if isinstance(s, (list, tuple)):
            for x in s: self(x)
            return
        if not isinstance(s, str):
            self.cur.append(s); return
        for line in s.split('\n'):
            t = line.strip()
            if not t or t.startswith(';') or t.startswith('//'):
                continue
            if t.endswith(':'):
                self.cur.append(Label(t[:-1]))
            else:
                self.cur.append(I(t))

    def mark(self, n): self.cur.append(Mark(n))
    def waitvm(self, n, skip=0, extra=''): self.cur.append(WaitVM(n, skip, extra))
    def raw(self, t): self.cur.append(Raw(t))
    def begin_loop(self): self.stack.append([])
    def end_loop(self, times=3):
        b = self.stack.pop(); self.cur.append(Loop(b, times))


def _walk(items):
    for it in items:
        if isinstance(it, Loop):
            for _ in range(it.times):
                yield from _walk(it.body)
        else:
            yield it


def _static(items):
    for it in items:
        if isinstance(it, Loop):
            yield from _static(it.body)
        else:
            yield it


def pass_waits(items):
    vm = []
    lg = []
    marks = {}
    nvm = 0
    for it in _walk(items):
        if isinstance(it, Mark):
            marks.setdefault(it.name, []).append(nvm)
            continue
        if isinstance(it, WaitVM):
            ms = marks.get(it.name, [])
            if len(ms) <= it.skip:
                continue
            pos = ms[-1 - it.skip]
            n = nvm - pos
            n = min(n, 63)
            it.n = n if it.n is None else min(it.n, n)
            vm = vm[len(vm) - n:] if n < len(vm) else vm
            if n == 0: vm = []
            continue
        if isinstance(it, (Label, Raw)):
            continue
        ins = it
        if ins.op == 's_waitcnt':
            m = re.search(r'vmcnt\((\d+)\)', ins.txt)
            if m:
                n = int(m.group(1)); vm = vm[len(vm) - n:] if 0 < n < len(vm) else ([] if n == 0 else vm)
            m = re.search(r'lgkmcnt\((\d+)\)', ins.txt)
            if m:
                n = int(m.group(1))
                if n == 0: lg = []
                elif not any(o['smem'] for o in lg): lg = lg[len(lg) - n:] if n < len(lg) else lg
            continue
        touch = set(ins.src) | set(ins.dst)
        needv = None
        for k, o in enumerate(vm):
            if o['dst'] & touch:
                n = len(vm) - 1 - k
                needv = n if needv is None else min(needv, n)
        needl = None
        for k, o in enumerate(lg):
            if o['dst'] & touch:
                n = len(lg) - 1 - k
                if any(x['smem'] for x in lg): n = 0
                needl = n if needl is None else min(needl, n)
        if needv is not None:
            needv = min(needv, 63)
            vm = vm[len(vm) - needv:] if needv > 0 else []
        if needl is not None:
            needl = min(needl, 15)
            lg = lg[len(lg) - needl:] if needl > 0 else []
        if needv is not None or needl is not None:
            pv, pl = ins.pre_wait if ins.pre_wait else (None, None)
            if needv is not None: pv = needv if pv is None else min(pv, needv)
            if needl is not None: pl = needl if pl is None else min(pl, needl)
            ins.pre_wait = (pv, pl)
        if ins.kind in ('vload', 'vstore', 'dma'):
            vm.append(dict(dst=set(ins.dst) if ins.kind == 'vload' else set()))
            nvm += 1
        elif ins.kind == 'ds':
            lg.append(dict(dst=set(ins.dst), smem=False))
        elif ins.kind == 'smem':
            lg.append(dict(dst=set(ins.dst), smem=True))


def _need(prev, cur):
    n = 0
    pd = set(prev.dst)
    cs = set(cur.src); cd = set(cur.dst)
    if prev.kind == 'valu':
        vd = {r for r in pd if r[0] in 'va'}
        sd = {r for r in pd if r[0] == 's'}
        if cur.kind == 'mfma' and vd & cs: n = max(n, 2)
        if cur.kind == 'valu':
            if cur.op.startswith('v_permlane') and vd & cs: n = max(n, 2)
            if cur.op.startswith(('v_readfirstlane', 'v_readlane')) and vd & cs: n = max(n, 1)
            if ('row_' in cur.txt or 'quad_perm' in cur.txt) and vd & cs: n = max(n, 2)
            if prev.op.startswith(TRANS) and not cur.op.startswith(TRANS) and vd & (cs | cd): n = max(n, 1)
            if sd & cs:
                n = max(n, 4 if cur.op.startswith(('v_readlane', 'v_writelane')) else 2)
            if ('op_sel' in prev.txt or 'sdwa' in prev.txt or 'dst_sel' in prev.txt) and vd & (cs | cd): n = max(n, 1)
        if cur.kind in ('vload', 'vstore', 'dma') and sd & cs: n = max(n, 5)
        if prev.op.startswith(TRANS) and cur.kind in ('vstore', 'ds') and vd & cs: n = max(n, 1)
    elif prev.kind == 'mfma':
        p = prev.passes
        if cur.kind == 'mfma':
            ab, c = cur.cexact
            if pd & set(ab): n = max(n, 8 if p == 4 else 12)
            if pd & set(c):
                if tuple(prev.dst) == tuple(c) and cur.passes == p: pass
                else: n = max(n, 6 if p == 4 else 10)
            if pd & cd and not (tuple(prev.dst) == tuple(c)):
                n = max(n, 6 if p == 4 else 10)
        elif cur.kind in ('valu', 'vload', 'vstore', 'dma', 'ds'):
            if pd & (cs | cd): n = max(n, 8 if p == 4 else 12)
            if cur.kind == 'valu' and set(prev.cexact[1]) & cd: n = max(n, 3 if p == 4 else 7)
    elif prev.kind == 'salu':
        if ('m', 0) in pd and cur.kind == 'dma': n = max(n, 1)
    elif prev.kind == 'vstore' and prev.wide:
        data = set(prev.cexact)
        if data & cd: n = max(n, 2 if cur.kind == 'valu' else 1)
    return n


def pass_hazards(items):
    hist = []
    pos = 0
    for it in _walk(items):
        if isinstance(it, Raw):
            continue
        if not isinstance(it, I):
            if isinstance(it, WaitVM) and (it.n is not None or it.extra): pos += 1
            if isinstance(it, Touch) and it.pre_wait: pos += 1
            continue
        if it.pre_wait: pos += 1
        need = 0
        nmf = 0
        for (p, ppos) in reversed(hist):
            d = pos - ppos - 1
            if it.kind == 'valu' and p.kind == 'valu': d += nmf
            if p.kind == 'mfma': nmf += 1
            if d > 20: break
            r = _need(p, it)
            if r > d: need = max(need, r - d)
        if need > it.pre_nop:
            it.pre_nop = need
        pos += it.pre_nop
        hist.append((it, pos + it.nstates() - 1))
        pos += it.nstates()
        if len(hist) > 40: hist = hist[-30:]


def emit(items):
    out = []
    for it in _static(items):
        if isinstance(it, Label): out.append(it.name + ':')
        elif isinstance(it, Raw): out.append(it.txt)
        elif isinstance(it, Mark): pass
        elif isinstance(it, Touch):
            if it.pre_wait:
                pv, pl = it.pre_wait
                w = []
                if pv is not None: w.append(f'vmcnt({pv})')
                if pl is not None: w.append(f'lgkmcnt({pl})')
                out.append('s_waitcnt ' + ' '.join(w))
        elif isinstance(it, WaitVM):
            if it.n is not None: out.append(f's_waitcnt vmcnt({it.n}){" " + it.extra if it.extra else ""}')
            elif it.extra: out.append(f's_waitcnt {it.extra}')
        else:
            if it.pre_wait:
                pv, pl = it.pre_wait
                w = []
                if pv is not None: w.append(f'vmcnt({pv})')
                if pl is not None: w.append(f'lgkmcnt({pl})')
                out.append('s_waitcnt ' + ' '.join(w))
            n = it.pre_nop
            while n > 0:
                k = min(n, 16); out.append(f's_nop {k - 1}'); n -= k
            out.append(it.txt)
    return out


def finalize(prog):
    items = prog.stack[0]
    pass_waits(items)
    pass_hazards(items)
    return emit(items)


def weave(main, fill, per=2, start=0, cost=None):
    out = []
    fi = 0
    def c(x):
        if not isinstance(x, str): return 0
        op = x.split()[0]
        if op.startswith('buffer_'): return 3
        if op.startswith(TRANS): return 1.5
        return 1
    cost = cost or c
    carry = 0.0
    for k, g in enumerate(main):
        out.extend(g)
        if k < start: continue
        budget = per + carry
        while fi < len(fill):
            f = fill[fi]
            if isinstance(f, tuple) and f[0] == 'at':
                if f[1] > k: break
                fi += 1; continue
            cc = cost(f)
            if cc > budget and budget < per: break
            if budget <= 0: break
            out.append(f); budget -= cc; fi += 1
        carry = min(budget, 0.0)
    for f in fill[fi:]:
        if isinstance(f, tuple): continue
        out.append(f)
    return out


def icost(x):
    if isinstance(x, (Mark, Label)): return 0
    if isinstance(x, (WaitVM, Touch)): return 4
    if isinstance(x, Raw): return 4
    t = x.strip()
    if t.endswith(':'): return 0
    op = t.split()[0]
    if op.startswith('buffer_load') or op.startswith('global_load'): return 10
    if op.startswith('buffer_store'):
        return 23 if ('x4' in op or 'x3' in op) else (15 if 'x2' in op else 10)
    if op.startswith('ds_write'):
        return 21 if 'b128' in op else (13 if 'b64' in op else 8)
    if op.startswith('ds_'): return 4
    if op.startswith(TRANS) or op.startswith('v_permlane'): return 8
    if op.startswith('v_'): return 4
    if op == 's_barrier': return 26
    if op.startswith('s_waitcnt') or op.startswith('s_nop'): return 4
    if op.startswith('s_cbranch') or op.startswith('s_branch'): return 4
    return 3

def iclass(x):
    if not isinstance(x, str): return 'x'
    t = x.strip()
    if t.endswith(':'): return 'x'
    op = t.split()[0]
    if op.startswith(('buffer_', 'global_')): return 'vmem'
    if op.startswith('ds_'): return 'ds'
    if op.startswith(TRANS) or op.startswith('v_permlane'): return 't'
    if op.startswith('v_'): return 'v'
    return 's'

def sched(main, fill, last=None, vspace=4, gmin=8.0):
    n = len(main)
    if last is None: last = n
    items = [f for f in fill]
    rem = sum(icost(f) for f in items if not isinstance(f, tuple))
    fixed = [sum(icost(x) for x in main[k][2]) + (sum(icost(x) for x in main[k + 1][0]) if k + 1 < n else 0) for k in range(n)]
    out = []
    fi = 0
    last_vmem = -99
    for k in range(n):
        pre, mf, post = main[k]
        out.extend(pre); out.append(mf); out.extend(post)
        used = fixed[k]
        if k >= last: continue
        fixed_rem = sum(fixed[k:last])
        G = max(gmin, (rem + fixed_rem) / (last - k))
        valu_seen = False
        while fi < len(items):
            f = items[fi]
            if isinstance(f, tuple):
                if f[0] == 'at' and f[1] > k: break
                fi += 1; continue
            c = icost(f); cl = iclass(f)
            if c == 0:
                out.append(f); fi += 1; continue
            if used >= G - 1.9 and k < last - 1: break
            if cl in ('vmem', 'ds'):
                if valu_seen and k < last - 1: break
                if cl == 'vmem' and 'load_dword ' not in f:
                    if k - last_vmem < vspace and k < last - 1: break
                    last_vmem = k
            if cl == 't' and used > 4.5 and k < last - 1: break
            out.append(f); fi += 1; used += c; rem -= c
            if cl == 'v': valu_seen = True
            if cl == 't':
                valu_seen = True
                if k < last - 1: break
    for f in items[fi:]:
        if not isinstance(f, tuple): out.append(f)
    return out


def ta_cost(f):
    op = f.split()[0]
    if ';ta=' in f: return int(f.split(';ta=')[1].split()[0])
    if op.startswith('buffer_store'):
        if 'x4' in op or 'x3' in op: return 176
        if 'x2' in op: return 256
        return 40
    if 'x4' in op or 'x3' in op or 'x2' in op: return 76 if ' sc1' in f else 64
    return 32

def sched2(main, streams, last=None, backlog=200, gmin=8.0, debug=None, ta0=0, bfirst=True):
    n = len(main)
    if last is None: last = n
    def cost(f):
        if isinstance(f, tuple):
            return sum(icost(x) for x in f[1]) if f[0] == 'atom' else 0
        return icost(f)
    S = [dict(items=list(it), i=0, eager=e, held=0) for (it, e) in streams]
    rem = sum(cost(f) for s_ in S for f in s_['items'])
    fixed = [sum(icost(x) for x in main[k][2]) + (sum(icost(x) for x in main[k + 1][0]) if k + 1 < n else 0) for k in range(n)]
    out = []
    now = 0.0
    ta_free = float(ta0)
    def head_vmem(s_):
        items = s_['items']; j = s_['i']
        while j < len(items) and ((isinstance(items[j], str) and iclass(items[j]) == 's') or isinstance(items[j], (Mark, WaitVM))): j += 1
        if j < len(items) and isinstance(items[j], str) and iclass(items[j]) == 'vmem': return items[j]
        return None
    for k in range(n):
        pre, mf, post = main[k]
        out.extend(pre); out.append(mf); out.extend(post)
        used = fixed[k]
        if k >= last:
            now += max(16, 8 + used); continue
        fixed_rem = sum(fixed[k:last])
        G = max(gmin, (rem + fixed_rem) / (last - k))
        valu_seen = False
        closed = False
        fin = k >= last - 1
        if bfirst:
            order = [s_ for s_ in S if not s_['eager'] and head_vmem(s_)] + [s_ for s_ in S if s_['eager']] + \
                    [s_ for s_ in S if not s_['eager'] and not head_vmem(s_)]
        else:
            order = [s_ for s_ in S if s_['eager']] + [s_ for s_ in S if not s_['eager']]
        nvm = 0
        for s_ in order:
            items = s_['items']
            while s_['i'] < len(items) and not closed:
                f = items[s_['i']]
                if isinstance(f, tuple) and f[0] == 'at':
                    if f[1] > k and not fin: break
                    s_['i'] += 1; continue
                c = cost(f)
                cl = 'a' if isinstance(f, tuple) else iclass(f)
                if c == 0:
                    out.append(f); s_['i'] += 1; continue
                hv = head_vmem(s_)
                if hv is not None and not fin:
                    if ta_free - now > backlog or valu_seen or nvm: break
                    if fixed[k] > 0 and s_['held'] < 2 and cl != 'vmem' or (fixed[k] > 0 and cl == 'vmem' and s_['held'] < 2 and not s_.get('pfx')):
                        s_['held'] += 1; break
                    s_['pfx'] = cl != 'vmem'
                elif not s_['eager'] and used >= G - 1.9 and not fin: break
                if cl == 'ds' and valu_seen and not fin: break
                if cl == 't' and used > 4.5 and not fin: break
                if cl == 'vmem':
                    ta_free = max(ta_free, now) + ta_cost(f); nvm += 1; s_['held'] = 0; s_['pfx'] = False
                if cl == 'a': out.extend(f[1])
                else: out.append(f)
                s_['i'] += 1; used += c; rem -= c
                if cl == 'v' or (cl == 'a' and any(iclass(x) == 'v' for x in f[1])): valu_seen = True
                if cl == 't':
                    valu_seen = True
                    if not fin: closed = True
        if debug is not None: debug.append(used)
        now += max(16, 8 + used)
    for s_ in S:
        for f in s_['items'][s_['i']:]:
            if isinstance(f, tuple):
                if f[0] == 'atom': out.extend(f[1])
            else: out.append(f)
    return out
```

```python
import sys
from ab import *

KNAME = "interleave_layers__ssm_conv_h3__swiglu_ffn__prompt_kernel"
T, D, F = 2048, 640, 1728

KVT = 0x0000000
YF = 0x0300000
XF = 0x0600000
ACT = 0x0C00000
ST0 = 0x1A00000
ST2 = 0x1B00000
STX = 0x1D00000
FP = 0x1F00000
FY = 0x1F02000
FA = 0x1F10000
NONCE = 0x1F80000
OOB = 0x40000000
PROF = 0x2000000

S_WG, S_W = 2, 3
SRD_WS = 4
SRD_A = 8
SRD_B = 12
SRD_C = 16
S_NONCE = 20
S_XCD, S_SLOT, S_GRP, S_HALF = 21, 22, 23, 24
S_T0 = 26
S_STAMP = 48
P_Q, P_K, P_V, P_SK, P_HK, P_SD, P_X, P_WG, P_WU, P_WD, P_OUT, P_DBG, P_WS = [64 + 2 * i for i in range(13)]
S_SPIN = 90

def v(i, n=1): return f'v{i}' if n == 1 else f'v[{i}:{i+n-1}]'
def a(i, n=1): return f'a{i}' if n == 1 else f'a[{i}:{i+n-1}]'
def s(i, n=1): return f's{i}' if n == 1 else f's[{i}:{i+n-1}]'

class Cfg:
    stop_after = None
    prof = False
    spin_limit = 40000
    layers = 2
    lag = 2
    e2_at = 0
    gl_at = 0
    act_sc1 = 1
    g2x = ''
    g1x = ''
    g1per = 20
    g2we = 2
    g1we = 4
    lprof = False
    x_sc1 = 1
    g2per = 30
    g1bkl = 330
    g1la = 10
    g1fl = 24
    g1chk = 0
    bkl = 130
    verbose = 0
    slp = 0
    pf = 0
    vsp = 4
    tsb = '2.3.4.5'

cfg = Cfg()
_uid = [0]
def uid(pfx):
    _uid[0] += 1
    return f'{pfx}_{_uid[0]}'

def srd(p, dst, ptr, nbytes):
    p(f's_mov_b32 {s(dst)}, {s(ptr)}')
    p(f's_mov_b32 {s(dst+1)}, {s(ptr+1)}')
    p(f's_mov_b32 {s(dst+2)}, {hex(nbytes)}')
    p(f's_mov_b32 {s(dst+3)}, 0x20000')

nstamp = [0]
def stamp(p, idx):
    if not cfg.prof: return
    p(f's_memrealtime {s(S_STAMP + 2*idx, 2)}')
    p('s_waitcnt lgkmcnt(0)')

def flush_stamps(p, n, vt=2):
    if not cfg.prof: return
    p(f's_lshl_b32 s26, s{S_WG}, 2')
    p(f's_add_u32 s26, s26, s{S_W}')
    p(f's_lshl_b32 s26, s26, 6')
    p(f's_add_u32 s26, s26, {hex(PROF)}')
    p(f'v_mov_b32 v{vt+1}, 0')
    for i in range(n):
        p(f'v_mov_b32 v{vt}, s{S_STAMP + 2*i}')
        p(f'buffer_store_dword v{vt}, v{vt+1}, s[4:7], s26 offen offset:{4*i}')
        p('s_nop 1')

PROF2 = PROF + 0x100000
def lstamp_init(p):
    if not cfg.lprof or cfg.lprof in (3, 5, 6): return
    p(f's_lshl_b32 s62, s{S_WG}, 2')
    p(f's_add_u32 s62, s62, s{S_W}')
    p('s_lshl_b32 s62, s62, 15')
    p(f's_add_u32 s62, s62, {hex(PROF2)}')
def lstamp(tmpv, offv, tag=None, lvl=2):
    if not cfg.lprof or int(cfg.lprof) < lvl or cfg.lprof in (3, 5, 6): return []
    if tag is None and lvl == 1:
        return ['s_memrealtime s[60:61]', 's_memtime s[58:59]', 's_waitcnt lgkmcnt(0)', f'v_mov_b32 v{tmpv}, s60',
                f'buffer_store_dword v{tmpv}, v{offv}, s[4:7], s62 offen', 's_nop 0', f'v_mov_b32 v{tmpv}, s58',
                f'buffer_store_dword v{tmpv}, v{offv}, s[4:7], s62 offen offset:4', 's_nop 0', 's_add_u32 s62, s62, 256']
    L = ['s_memrealtime s[60:61]', 's_waitcnt lgkmcnt(0)', f'v_mov_b32 v{tmpv}, s60',
         f'buffer_store_dword v{tmpv}, v{offv}, s[4:7], s62 offen', 's_nop 0']
    if tag is not None:
        L += [f'v_mov_b32 v{tmpv}, {tag}', f'buffer_store_dword v{tmpv}, v{offv}, s[4:7], s62 offen offset:4', 's_nop 0']
    L += ['s_add_u32 s62, s62, 256']
    return L

def cstamp_pre():
    if cfg.lprof != 3: return []
    return ['s_memtime s[58:59]']
def cstamp_post(ireg, vals):
    if cfg.lprof != 3: return []
    L = []
    for n, val in enumerate(vals):
        L += [f's_cmp_eq_u32 s{ireg}, {val}', f's_cselect_b32 s{94+n}, s58, s{94+n}']
    return L
def cstamp_post_static(i, vals):
    if cfg.lprof != 3 or i not in vals: return []
    return [f's_mov_b32 s{94 + vals.index(i)}, s58']
def cstamp_flush(p, vt=2):
    if cfg.lprof != 3: return
    p(f's_lshl_b32 s26, s{S_WG}, 2')
    p(f's_add_u32 s26, s26, s{S_W}')
    p(f's_lshl_b32 s26, s26, 6')
    p(f's_add_u32 s26, s26, {hex(PROF2)}')
    p(f'v_mov_b32 v{vt+1}, 0')
    for i in range(8):
        p(f'v_mov_b32 v{vt}, s{94+i}')
        p(f'buffer_store_dword v{vt}, v{vt+1}, s[4:7], s26 offen offset:{4*i}')
        p('s_nop 1')

def llog_init(p):
    if cfg.lprof != 5: return
    p(f's_lshl_b32 s62, s{S_WG}, 2')
    p(f's_add_u32 s62, s62, s{S_W}')
    p('s_lshl_b32 s62, s62, 12')
    p(f's_add_u32 s62, s62, {hex(PROF2 + 0x10000)}')
def llog_in():
    if cfg.lprof != 5: return []
    return ['s_memrealtime s[60:61]', 's_waitcnt lgkmcnt(0)', 's_mov_b32 s63, s60']
def llog_out(tag, tv):
    if cfg.lprof != 5: return []
    return ['s_memrealtime s[60:61]', 's_waitcnt lgkmcnt(0)', 's_mov_b64 exec, 1',
            f'v_mov_b32 v{tv}, 0', f'v_mov_b32 v{tv+1}, {tag}', 's_nop 1',
            f'buffer_store_dword v{tv+1}, v{tv}, s[4:7], s62 offen', 's_nop 1',
            f'v_mov_b32 v{tv+1}, s63', 's_nop 1', f'buffer_store_dword v{tv+1}, v{tv}, s[4:7], s62 offen offset:4', 's_nop 1',
            f'v_mov_b32 v{tv+1}, s60', 's_nop 1', f'buffer_store_dword v{tv+1}, v{tv}, s[4:7], s62 offen offset:8',
            's_waitcnt vmcnt(0)', 's_mov_b64 exec, -1', 's_add_u32 s62, s62, 16']
def rstamp_pre():
    if cfg.lprof != 5: return []
    return ['s_memrealtime s[58:59]']
def rstamp_post(reg):
    if cfg.lprof != 5: return []
    return [f's_mov_b32 s{reg}, s58']
def rstamp_flush(p, n, vt=2):
    if cfg.lprof != 5: return
    p(f's_lshl_b32 s26, s{S_WG}, 2')
    p(f's_add_u32 s26, s26, s{S_W}')
    p(f's_lshl_b32 s26, s26, 7')
    p(f's_add_u32 s26, s26, {hex(PROF2)}')
    p(f'v_mov_b32 v{vt+1}, 0')
    for i in range(n):
        p(f'v_mov_b32 v{vt}, s{64+i}')
        p(f'buffer_store_dword v{vt}, v{vt+1}, s[4:7], s26 offen offset:{4*i}')
        p('s_nop 1')

TS_REGS = list(range(64, 84)) + list(range(94, 102))
def tstamp(i, n):
    if cfg.lprof != 6: return []
    bodies = [int(x) for x in str(cfg.tsb).split('.')]
    if i not in bodies: return []
    return ['s_memrealtime s[58:59]', 's_waitcnt lgkmcnt(0)', f's_mov_b32 s{TS_REGS[7*bodies.index(i)+n]}, s58']
def tstamp_flush(p, vt=2):
    if cfg.lprof != 6: return
    p(f's_lshl_b32 s26, s{S_WG}, 2')
    p(f's_add_u32 s26, s26, s{S_W}')
    p(f's_lshl_b32 s26, s26, 7')
    p(f's_add_u32 s26, s26, {hex(PROF2)}')
    p(f'v_mov_b32 v{vt+1}, 0')
    for i in range(28):
        p(f'v_mov_b32 v{vt}, s{TS_REGS[i]}')
        p(f'buffer_store_dword v{vt}, v{vt+1}, s[4:7], s26 offen offset:{4*i}')
        p('s_nop 1')

def err_exit(p, code):
    p.raw(f'''s_mov_b32 s8, s{P_DBG}
s_mov_b32 s9, s{P_DBG+1}
s_mov_b32 s10, 0x100
s_mov_b32 s11, 0x20000
v_mov_b32 v2, {hex(code)}
v_mov_b32 v3, {hex(4 * (code & 63))}
s_nop 1
buffer_store_dword v2, v3, s[8:11], 0 offen
s_waitcnt vmcnt(0)
s_endpgm''')

def poll_flags(p, vt, voff, soff, code):
    l0, l1, le = uid('Lpoll'), uid('Lpok'), uid('Lperr')
    p.raw(f'''s_mov_b32 s{S_SPIN}, {cfg.spin_limit}
{l0}:
buffer_load_dword v{vt}, v{voff}, s[4:7], {soff} offen sc1
s_waitcnt vmcnt(0)
v_cmp_ne_u32 vcc, s{S_NONCE}, v{vt}
s_cmp_eq_u64 vcc, 0
s_cbranch_scc1 {l1}
{f"s_sleep {cfg.slp}" if cfg.slp else ""}
s_sub_u32 s{S_SPIN}, s{S_SPIN}, 1
s_cmp_lg_u32 s{S_SPIN}, 0
s_cbranch_scc1 {l0}''')
    err_exit(p, code)
    p.raw(f'{l1}:')
    p('s_waitcnt vmcnt(0)')

def prologue(p):
    p(f'''
    s_cmp_ge_u32 s2, 256
    s_cbranch_scc1 Lend
    s_load_dwordx16 s[64:79], s[0:1], 0
    s_load_dwordx8 s[80:87], s[0:1], 64
    s_load_dwordx2 s[88:89], s[0:1], 96
    v_lshrrev_b32 v2, 6, v0
    v_and_b32 v1, 63, v0
    v_mov_b32 v3, 0
    v_readfirstlane_b32 s{S_W}, v2
    s_and_b32 s{S_XCD}, s2, 7
    s_lshr_b32 s{S_SLOT}, s2, 3
    s_lshr_b32 s{S_GRP}, s{S_XCD}, 1
    s_and_b32 s{S_HALF}, s{S_XCD}, 1
    s_waitcnt lgkmcnt(0)
    ''')
    srd(p, SRD_WS, P_WS, 0x10000000)
    p(f's_mov_b32 s26, {hex(NONCE)}')
    p(f'buffer_load_dword v4, v3, s[4:7], s26 offen sc1')

def stage_P(p):
    K0, V0, SK0 = 16, 38, 54
    KU, VU, SU, R = 64, 76, 84, 88
    O = 96
    lskip = uid('LskipP')
    p(f's_cmp_eq_u32 s{S_W}, 3')
    p(f's_cbranch_scc1 {lskip}')
    p(f's_cmp_eq_u32 s{S_W}, 2')
    p('s_cselect_b32 s27, 0, -1')
    p('s_mov_b32 exec_hi, s27')
    srd(p, SRD_A, P_K, T * D * 2)
    srd(p, SRD_B, P_V, T * D * 2)
    srd(p, SRD_C, P_SK, D * 8)
    p(f'''
    v_and_b32 v5, 7, v0
    v_lshrrev_b32 v6, 3, v0
    s_lshl_b32 s28, s{S_SLOT}, 6
    s_mul_i32 s29, s{S_XCD}, 80
    v_lshlrev_b32 v7, 3, v5
    v_add_u32 v7, s28, v7
    v_lshlrev_b32 v8, 2, v6
    v_add_u32 v8, s29, v8
    v_mul_u32_u24 v9, 1280, v7
    v_lshl_add_u32 v9, v8, 1, v9
    v_subrev_u32 v10, 3840, v9
    v_cmp_eq_u32 vcc, 0, v7
    v_mov_b32 v11, 0x80000000
    v_cndmask_b32 v10, v10, v11, vcc
    v_lshlrev_b32 v12, 3, v8
    s_mov_b32 s30, 3840
    s_mov_b32 s31, 7680
    ''')
    for i in range(3):
        p(f'buffer_load_dwordx2 {v(K0+2*i,2)}, v10, s[8:11], 0 offen offset:{1280*i}')
    for i in range(8):
        so = ['0', 's30', 's31'][i // 3]
        p(f'buffer_load_dwordx2 {v(K0+6+2*i,2)}, v9, s[8:11], {so} offen offset:{1280*(i%3)}')
        p(f'buffer_load_dwordx2 {v(V0+2*i,2)}, v9, s[12:15], {so} offen offset:{1280*(i%3)}')
    p(f'buffer_load_dwordx4 {v(SK0,4)}, v12, s[16:19], 0 offen')
    p(f'buffer_load_dwordx4 {v(SK0+4,4)}, v12, s[16:19], 0 offen offset:16')
    p(f'''
    v_lshlrev_b32 v13, 12, v8
    v_lshl_add_u32 v13, v7, 1, v13
    s_mov_b32 s32, {hex(KVT)}
    s_mov_b32 s33, {hex(KVT+4096)}
    s_mov_b32 s34, {hex(KVT+8192)}
    s_mov_b32 s35, {hex(KVT+12288)}
    s_mov_b32 s36, 0xffff0000
    ''')
    if cfg.prof == 'P':
        stamp(p, 2)
        p('s_waitcnt vmcnt(0)')
        stamp(p, 3)
    for c in range(4):
        w, hi = c >> 1, c & 1
        def unp(dst, src):
            if hi: return f'v_and_b32 v{dst}, s36, v{src}'
            return f'v_lshlrev_b32 v{dst}, 16, v{src}'
        for i in range(11): p(unp(KU + i, K0 + 2 * i + w))
        for i in range(8): p(unp(VU + i, V0 + 2 * i + w))
        p(f'v_lshlrev_b32 v{SU}, 16, v{SK0+2*c}')
        p(f'v_and_b32 v{SU+1}, s36, v{SK0+2*c}')
        p(f'v_lshlrev_b32 v{SU+2}, 16, v{SK0+2*c+1}')
        p(f'v_and_b32 v{SU+3}, s36, v{SK0+2*c+1}')
        for t in range(8): p(f'v_mul_f32 v{R+t}, v{KU+t+3}, v{SU}')
        for j in range(1, 4):
            for t in range(8): p(f'v_fmac_f32 v{R+t}, v{KU+t+3-j}, v{SU+j}')
        for t in range(8): p(f'v_mul_f32 v{R+t}, v{R+t}, v{VU+t}')
        for m in range(4):
            p(f'v_cvt_pk_bf16_f32 v{O+4*c+m}, v{R+7-2*m}, v{R+6-2*m}')
        p(f'buffer_store_dwordx4 {v(O+4*c,4)}, v13, s[4:7], s{32+c} offen sc1')
    p('s_mov_b64 exec, -1')
    if cfg.prof == 'P': stamp(p, 4)
    p(f'{lskip}:')
    p('s_waitcnt vmcnt(0)')
    p(f'v_readfirstlane_b32 s{S_NONCE}, v4')
    p(f's_add_u32 s{S_NONCE}, s{S_NONCE}, 1')
    if cfg.prof == 'P': stamp(p, 5)
    p('s_barrier')
    lf = uid('LnoflagP')
    p(f's_cmp_lg_u32 s{S_W}, 0')
    p(f's_cbranch_scc1 {lf}')
    p(f'''
    s_lshl_b32 s26, s{S_XCD}, 5
    s_add_u32 s26, s26, s{S_SLOT}
    s_lshl_b32 s26, s26, 4
    s_add_u32 s26, s26, {hex(FP)}
    v_mov_b32 v2, s{S_NONCE}
    s_mov_b64 exec, 1
    buffer_store_dword v2, v3, s[4:7], s26 offen sc1
    s_mov_b64 exec, -1
    ''')
    p(f'{lf}:')

HW = 21248
HCOPY = 4160
YBUF = 4 * HW

def conv_prep_H(p):
    X, Y, Z, C0, C2 = 64, 84, 104, 124, 144
    srd(p, SRD_A, P_HK, D * T * 2)
    p(f'''
    s_lshl_b32 s39, s38, 12
    v_lshlrev_b32 v5, 4, v1
    v_subrev_u32 v6, 32, v5
    v_add_u32 v7, 992, v5
    v_mov_b32 v8, 0
    ''')
    for i in range(5):
        if i == 0: vo, so = 6, 's39'
        else:
            vo = 7
            so = f's{40 + i}'
            p(f's_add_u32 s{40+i}, s39, {1024*(i-1)}')
        p(f'buffer_load_dwordx4 {v(X+4*i,4)}, v{vo}, s[8:11], {so} offen')
        p(f'buffer_load_dwordx4 {v(Y+4*i,4)}, v{vo}, s[8:11], {so} offen offset:4')
        p(f'buffer_load_dwordx4 {v(Z+4*i,4)}, v{vo}, s[8:11], {so} offen offset:8')
    p(f'buffer_load_dwordx2 v[10:11], v8, s[8:11], s39 offen')
    srd(p, SRD_B, P_SD, D * 2)
    p('s_lshl_b32 s40, s38, 1')
    p('buffer_load_ushort v12, v8, s[12:15], s40 offen')
    p(f'''
    s_mul_i32 s45, s{S_W}, {HW}
    v_add_u32 v9, s45, v5
    v_cmp_eq_u32 vcc, 1, v1
    ''')
    p(f'v_cndmask_b32 v{Y+3}, v{Y+3}, v10, vcc')
    p(f'v_cndmask_b32 v{Z+2}, v{Z+2}, v10, vcc')
    p(f'v_cndmask_b32 v{Z+3}, v{Z+3}, v11, vcc')
    for i in range(5):
        for k in range(4):
            p(f'v_alignbit_b32 v{C0+4*i+k}, v{Y+4*i+k}, v{X+4*i+k}, 16')
            p(f'v_alignbit_b32 v{C2+4*i+k}, v{Z+4*i+k}, v{Y+4*i+k}, 16')
        if i == 4: p('s_mov_b64 exec, 15')
        p(f'ds_write_b128 v9, {v(C0+4*i,4)} offset:{1024*i}')
        p(f'ds_write_b128 v9, {v(Y+4*i,4)} offset:{HCOPY + 1024*i}')
        p(f'ds_write_b128 v9, {v(C2+4*i,4)} offset:{2*HCOPY + 1024*i}')
        p(f'ds_write_b128 v9, {v(Z+4*i,4)} offset:{3*HCOPY + 1024*i}')
        if i == 4: p('s_mov_b64 exec, -1')
    p(f'''
    v_lshlrev_b32 v13, 3, v1
    v_add_u32 v13, s45, v13
    v_mov_b32 v14, 0
    v_mov_b32 v15, 0
    ds_write_b64 v13, v[14:15] offset:{4*HCOPY}
    v_lshlrev_b32 v12, 16, v12
    ''')

def conv_main(p):
    ACC, HF, UF = 32, [64, 96], [128, 160]
    p(f'''
    s_mul_i32 s26, s37, 3277
    s_lshr_b32 s26, s26, 16
    s_lshl_b32 s26, s26, 9
    s_add_u32 s26, s26, {hex(FP)}
    v_and_b32 v2, 31, v1
    v_lshlrev_b32 v2, 4, v2
    ''')
    poll_flags(p, 4, 2, 's26', 1)
    stamp(p, 2)
    p(f'''
    s_add_u32 s26, s45, {4*HCOPY + 512}
    s_mov_b32 m0, s26
    s_lshl_b32 s27, s38, 12
    s_add_u32 s27, s27, {hex(KVT)}
    ''')
    for i in range(4):
        p(f'buffer_load_dwordx4 v5, s[4:7], s27 offen offset:{1024*i} sc1 lds')
    p(f'''
    v_and_b32 v16, 15, v1
    v_lshrrev_b32 v17, 4, v1
    v_and_b32 v18, 3, v16
    v_mul_u32_u24 v18, {HCOPY}, v18
    v_and_b32 v19, 12, v16
    v_lshl_add_u32 v18, v19, 1, v18
    v_lshl_add_u32 v18, v17, 4, v18
    v_add_u32 v18, s45, v18
    v_add_u32 v19, 2048, v18
    v_lshlrev_b32 v20, 1, v16
    v_sub_u32 v20, v20, v17
    v_lshlrev_b32 v20, 4, v20
    s_add_u32 s26, s45, {4*HCOPY + 16*33 - 448}
    v_add_u32 v20, s26, v20
    ''')
    p(f'''
    v_lshrrev_b32 v21, 1, v17
    v_lshl_add_u32 v21, v16, 1, v21
    v_lshlrev_b32 v21, 4, v21
    v_and_b32 v26, 1, v17
    v_sub_u32 v26, 1, v26
    v_lshl_add_u32 v21, v26, 3, v21
    s_add_u32 s26, s45, {4*HCOPY + 512}
    v_add_u32 v21, s26, v21
    s_lshl_b32 s26, s{S_W}, 1
    s_add_u32 s26, s26, {YBUF}
    v_lshlrev_b32 v26, 7, v16
    v_add_u32 v26, s26, v26
    v_lshl_add_u32 v27, v17, 2, v16
    ''')
    for e in range(4):
        p(f'v_add_u32 v28, {e}, v27')
        p(f'v_and_b32 v28, 15, v28')
        p(f'v_lshl_add_u32 v{22+e}, v28, 3, v26')
    p(f'''
    v_lshrrev_b32 v26, 3, v0
    v_and_b32 v27, 7, v0
    v_and_b32 v28, 15, v26
    v_lshl_add_u32 v28, v27, 1, v28
    v_and_b32 v29, 15, v28
    v_add_u32 v28, 1, v28
    v_and_b32 v28, 15, v28
    v_lshlrev_b32 v30, 7, v26
    v_add_u32 v30, {YBUF}, v30
    v_lshl_add_u32 v29, v29, 3, v30
    v_lshl_add_u32 v28, v28, 3, v30
    v_mul_u32_u24 v30, 20480, v26
    v_lshl_add_u32 v30, v27, 4, v30
    ''')
    p('s_waitcnt vmcnt(0) lgkmcnt(0)')
    stamp(p, 3)

    def loadH(buf, q, r):
        m = 8 * q + r
        base, mm = (18, m) if m < 32 else (19, m - 32)
        return f'ds_read2_b64 {v(HF[buf]+4*q,4)}, v{base} offset0:{8*mm} offset1:{8*mm+1}'
    def loadU(buf, pp, r):
        j = 8 * pp - r
        return f'ds_read_b128 {v(UF[buf]+4*pp,4)}, v20 offset:{64*(j+7)}'

    def phase(tiles, ph, mid=None):
        nq = tiles[-1] + 1
        def loads(buf, r):
            L = []
            for q in range(nq):
                L.append(loadH(buf, q, r)); L.append(loadU(buf, q, r))
            return L
        p(loads(0, 0))
        for r in range(8):
            buf = r & 1
            mf = []
            pairs = [(i, q) for q in range(nq) for i in tiles if i >= q]
            pairs.sort(key=lambda x: max(x[1], x[0] - x[1]))
            for (i, q) in pairs:
                c = '0' if r == 0 and first_use(i, tiles, pairs, q) else v(ACC + 4 * i, 4)
                mf.append([f'v_mfma_f32_16x16x32_bf16 {v(ACC+4*i,4)}, {v(HF[buf]+4*q,4)}, {v(UF[buf]+4*(i-q),4)}, {c}'])
            fill = loads(buf ^ 1, r + 1) if r < 7 else []
            if mid and r in mid: fill = fill + mid[r]
            p(weave(mf, fill, per=1))

    def first_use(i, tiles, pairs, q):
        for (ii, qq) in pairs:
            if ii == i: return qq == q
        return False

    def epilogue(tiles, ph):
        KV, TMP = 64, 80
        for n, i in enumerate(tiles):
            p(f'ds_read_b64 {v(KV+2*n,2)}, v21 offset:{512*i}')
        for n, i in enumerate(tiles):
            k0, k1 = KV + 2 * n, KV + 2 * n + 1
            t = TMP + 8 * n
            p(f'v_and_b32 v{t+0}, 0xffff0000, v{k1}')
            p(f'v_lshlrev_b32 v{t+1}, 16, v{k1}')
            p(f'v_and_b32 v{t+2}, 0xffff0000, v{k0}')
            p(f'v_lshlrev_b32 v{t+3}, 16, v{k0}')
            for e in range(4):
                p(f'v_fma_f32 v{t+e}, v{t+e}, v12, v{ACC+4*i+e}')
            p(f'v_cvt_pk_bf16_f32 v{t+4}, v{t+0}, v{t+1}')
            p(f'v_cvt_pk_bf16_f32 v{t+5}, v{t+2}, v{t+3}')
            p(f'ds_write_b16 v22, v{t+4} offset:{2048*n}')
            p(f'ds_write_b16_d16_hi v23, v{t+4} offset:{2048*n}')
            p(f'ds_write_b16 v24, v{t+5} offset:{2048*n}')
            p(f'ds_write_b16_d16_hi v25, v{t+5} offset:{2048*n}')
        p('s_waitcnt lgkmcnt(0)')
        p('s_barrier')
        RD = 112
        for z in range(2):
            p(f'ds_read_b64 {v(RD+4*z,2)}, v29 offset:{4096*z}')
            p(f'ds_read_b64 {v(RD+4*z+2,2)}, v28 offset:{4096*z}')
        for z in range(2):
            p(f's_lshl_b32 s26, s37, 7')
            p(f's_add_u32 s26, s26, {hex(YF + ph*64*20480 + z*32*20480)}')
            p(f'buffer_store_dwordx4 {v(RD+4*z,4)}, v30, s[4:7], s26 offen sc1')
        p.mark(f'ystore{ph}')

    def publish(ph):
        L = []
        L.append(WaitVM(f'ystore{ph}'))
        L.append('s_barrier')
        return L
    def flagstore(ph):
        return [f's_lshl_b32 s26, s37, 4',
                f's_add_u32 s26, s26, {hex(FY + ph*160*16)}',
                f'v_mov_b32 v2, s{S_NONCE}',
                f'buffer_store_dword v2, v31, s[4:7], s26 offen sc1']
    p('''
    v_cmp_eq_u32 vcc, 0, v0
    v_mov_b32 v31, 0x40000000
    v_mov_b32 v2, 0
    v_cndmask_b32 v31, v31, v2, vcc
    ''')
    phase([0, 1, 2, 3], 0)
    epilogue([0, 1, 2, 3], 0)
    stamp(p, 4)
    phase([4, 5, 6, 7], 1, mid={2: publish(0) + flagstore(0)})
    epilogue([4, 5, 6, 7], 1)
    p(publish(1))
    p(flagstore(1))
    stamp(p, 5)

def allreduce(S, Q, Tm):
    return [f'v_permlane32_swap_b32 v{S}, v{Q}',
            f'v_add_f32 v{S}, v{S}, v{Q}',
            f'v_mov_b32 v{Tm}, v{S}',
            f'v_permlane16_swap_b32 v{S}, v{Tm}',
            f'v_add_f32 v{S}, v{S}, v{Tm}',
            f'v_mov_b32 v{Q}, v{S}',
            f'v_permlane32_swap_b32 v{S}, v{Q}']

def partial_stats(X, S, Q, Tm):
    L = [f'v_add_f32 v{S}, v{X}, v{X+1}', f'v_mul_f32 v{Q}, v{X}, v{X}']
    L.append(f'v_fmac_f32 v{Q}, v{X+1}, v{X+1}')
    for j in range(2, 8):
        L.append(f'v_add_f32 v{S}, v{S}, v{X+j}')
        L.append(f'v_fmac_f32 v{Q}, v{X+j}, v{X+j}')
    return L + allreduce(S, Q, Tm)

def unpack8(dst, src):
    L = []
    for k in range(4):
        L.append(f'v_lshlrev_b32 v{dst+2*k}, 16, v{src+k}')
        L.append(f'v_and_b32 v{dst+2*k+1}, 0xffff0000, v{src+k}')
    return L

def pack8(dst, src):
    return [f'v_cvt_pk_bf16_f32 v{dst+k}, v{src+2*k}, v{src+2*k+1}' for k in range(4)]

def gather_loads(E, voff, soff, srd='s[4:7]'):
    return [f'buffer_load_dwordx3 {v(E+4*i,3)}, v{voff}, {srd}, {soff} offen offset:{256*i} sc1' for i in range(5)]

def gather_check(E, T0, T1, spair):
    return [f'v_min3_u32 v{T0}, v{E+2}, v{E+6}, v{E+10}',
            f'v_max3_u32 v{T1}, v{E+2}, v{E+6}, v{E+10}',
            f'v_min3_u32 v{T0}, v{T0}, v{E+14}, v{E+18}',
            f'v_max3_u32 v{T1}, v{T1}, v{E+14}, v{E+18}',
            f'v_cmp_ne_u32 vcc, s{S_NONCE}, v{T0}',
            f'v_cmp_ne_u32 {s(spair,2)}, s{S_NONCE}, v{T1}',
            f's_or_b64 vcc, vcc, {s(spair,2)}',
            f's_cmp_eq_u64 vcc, 0']

def gather_sum(E, Tm):
    L = []
    for i in range(1, 5):
        L.append(f'v_add_f32 v{E}, v{E}, v{E+4*i}')
        L.append(f'v_add_f32 v{E+1}, v{E+1}, v{E+4*i+1}')
    return L + allreduce(E, E + 1, Tm)

INV_D = '0x3acccccd'
EPS = '0x3727c5ac'

def gather_block(p, E, voff, soff, T0, T1, code):
    l0, l1 = uid('Lg'), uid('Lgok')
    txt = [f's_mov_b32 s{S_SPIN}, {cfg.spin_limit}', f'{l0}:']
    txt += gather_loads(E, voff, soff)
    txt += ['s_waitcnt vmcnt(0)']
    chk = gather_check(E, T0, T1, 28)
    txt += chk[:4] + chk[4:6] + ['s_nop 0'] + chk[6:]
    txt += [f's_cbranch_scc1 {l1}'] + ([f's_sleep {cfg.slp}'] if cfg.slp else []) + [f's_sub_u32 s{S_SPIN}, s{S_SPIN}, 1', f's_cmp_lg_u32 s{S_SPIN}, 0', f's_cbranch_scc1 {l0}']
    p.raw('\n'.join(txt))
    err_exit(p, code)
    p.raw(f'{l1}:')
    p('s_waitcnt vmcnt(0)')

def stage_W(p, nch, ring, dma, reads, tag):
    for c in range(min(ring - 1, nch)):
        p(dma(c)); p.mark(f'{tag}{c}')
    for c in range(nch):
        p.waitvm(f'{tag}{c}', extra='lgkmcnt(0)')
        p('s_barrier')
        if c + ring - 1 < nch:
            p(dma(c + ring - 1)); p.mark(f'{tag}{c+ring-1}')
        p(reads(c))
    p('s_waitcnt lgkmcnt(0)')
    p('s_barrier')

def wdma_voff(p, dst0, dst1, rowbytes, scol):
    p(f"""
    v_lshrrev_b32 v{dst0}, 3, v1
    v_xor_b32 v{dst1}, 1, v{dst0}
    v_lshlrev_b32 v{dst0}, 5, v{dst0}
    v_lshlrev_b32 v{dst1}, 5, v{dst1}
    v_bfe_u32 v20, v1, 1, 2
    v_mul_u32_u24 v20, {rowbytes}, v20
    v_and_b32 v21, 1, v1
    v_lshl_add_u32 v20, v21, 4, v20
    v_add_u32 v20, s{scol}, v20
    v_add_u32 v{dst0}, v{dst0}, v20
    v_add_u32 v{dst1}, v{dst1}, v20
    """)

def wtr_addr(p, dst, ct_sgpr_expr):
    p(f"""
    v_lshrrev_b32 v20, 4, v1
    v_and_b32 v21, 1, v20
    v_xor_b32 v21, s{ct_sgpr_expr}, v21
    v_lshlrev_b32 v21, 7, v21
    v_lshl_add_u32 v21, v20, 10, v21
    v_bfe_u32 v20, v1, 2, 2
    v_lshl_add_u32 v21, v20, 5, v21
    v_and_b32 v20, 3, v1
    v_lshl_add_u32 v{dst}, v20, 3, v21
    """)

G2_ACTB = 55296
G2_RES = 2 * G2_ACTB
G2_DUMMY = G2_RES + 32768
class R2:
    L16, L16B, QOFF, ENTST, ENTLD, YOFF, RES, FAOFF = 2, 3, 4, 5, 6, 7, 8, 9
    RA1, RA2 = 10, 11
    YR = [0, 1, 10, 11]
    EQ = 12
    B = 16
    ACC = [32, 40]
    E = 48
    S3, Q3, FAV, T0, T1 = 51, 55, 59, 63, 67
    X = 68
    P = 76
    Y = 0
def g2_wreg(f): return a(4 * f, 4) if f < 64 else v(80 + 4 * (f - 64), 4)
def g2_wreg2(f, hh): return a(4 * f + 2 * hh, 2) if f < 64 else v(80 + 4 * (f - 64) + 2 * hh, 2)

def g2_setup(p):
    R = R2
    p(f"""
    s_sub_u32 s37, s{S_SLOT}, 21
    s_cmp_ge_u32 s37, 5
    s_cselect_b32 s38, 1, 0
    s_mul_i32 s39, s38, 5
    s_sub_u32 s39, s37, s39
    s_lshl_b32 s26, s{S_HALF}, 1
    s_add_u32 s38, s38, s26
    s_lshl_b32 s40, s39, 2
    s_add_u32 s40, s40, s{S_W}
    s_lshl_b32 s41, s38, 2
    s_add_u32 s41, s41, s{S_GRP}
    v_and_b32 v20, 15, v1
    v_lshrrev_b32 v21, 4, v1
    v_lshlrev_b32 v{R.L16}, 4, v1
    v_add_u32 v{R.L16B}, {G2_ACTB}, v{R.L16}
    v_mul_u32_u24 v{R.QOFF}, 1280, v20
    v_lshl_add_u32 v{R.QOFF}, v21, 3, v{R.QOFF}
    s_lshl_b32 s26, s40, 6
    v_add_u32 v{R.QOFF}, s26, v{R.QOFF}
    v_lshlrev_b32 v{R.ENTST}, 4, v20
    v_mov_b32 v22, {hex(OOB)}
    v_cmp_eq_u32 vcc, 0, v21
    v_mul_u32_u24 v{R.ENTLD}, 1280, v21
    v_lshl_add_u32 v{R.ENTLD}, v20, 4, v{R.ENTLD}
    v_cndmask_b32 v{R.ENTST}, v22, v{R.ENTST}, vcc
    v_lshlrev_b32 v{R.YOFF}, 7, v21
    v_lshl_add_u32 v{R.YOFF}, v20, 3, v{R.YOFF}
    s_lshl_b32 s26, s40, 10
    v_add_u32 v{R.YOFF}, s26, v{R.YOFF}
    s_lshl_b32 s26, s{S_W}, 10
    s_add_u32 s26, s26, {G2_RES}
    v_add_u32 v{R.RES}, s26, v{R.L16}
    s_mul_i32 s45, s{S_W}, 14
    s_min_u32 s45, s45, 40
    v_min_u32 v{R.FAOFF}, 13, v1
    v_add_u32 v{R.FAOFF}, s45, v{R.FAOFF}
    v_lshlrev_b32 v{R.FAOFF}, 4, v{R.FAOFF}
    s_lshl_b32 s45, s45, 10
    v_mov_b32 v{R.EQ+2}, s{S_NONCE}
    v_mov_b32 v{R.EQ+3}, s{S_NONCE}
    """)

def g2_qprep(p):
    R = R2
    srd(p, SRD_A, P_Q, T * D * 2)
    QF = 96
    p(f's_mul_i32 s26, s41, 20480')
    for i in range(8):
        p(f's_add_u32 s27, s26, {i*16*20480}')
        p(f'buffer_load_dwordx2 {v(QF+4*i,2)}, v{R.QOFF}, s[8:11], s27 offen')
        p(f'buffer_load_dwordx2 {v(QF+4*i+2,2)}, v{R.QOFF}, s[8:11], s27 offen offset:32')
    p(f's_mul_i32 s26, s41, 5120')
    p(f's_lshl_b32 s27, s40, 8')
    p(f's_add_u32 s26, s26, s27')
    p(f's_add_u32 s26, s26, {hex(ST0)}')
    for i in range(8):
        p(f'ds_write_b128 v{R.RES}, {v(QF+4*i,4)} offset:{4096*i}')
        p(unpack8(R.X, QF + 4 * i))
        p(partial_stats(R.X, R.EQ, R.EQ + 1, R.T0))
        p(f's_add_u32 s27, s26, {i*16*5120}')
        p(f'buffer_store_dwordx4 {v(R.EQ,4)}, v{R.ENTST}, s[4:7], s27 offen sc1')

def g2_stage_w(p):
    srd(p, SRD_A, P_WD, F * D * 2)
    V0, V1, TA = 24, 25, [26, 27, 28, 29]
    p(f's_lshl_b32 s26, s39, 8')
    wdma_voff(p, V0, V1, 1280, 26)
    for h in range(2):
        p(f's_lshl_b32 s27, s{S_W}, 1')
        p(f's_add_u32 s27, s27, {h}')
        wtr_addr(p, TA[h], 27)
        p(f'v_add_u32 v{TA[2+h]}, 49152, v{TA[h]}')
    p(f's_mul_i32 s42, s{S_W}, {2*5120}')
    p(f's_lshl_b32 s43, s{S_W}, 11')
    RING, KS = 6, 2
    def dma(c):
        L = []
        slot = (c % RING) * KS * 8192
        for k in range(KS):
            ks = c * KS + k
            for par in range(2):
                L.append(f's_add_u32 m0, s43, {slot + k*8192 + par*1024}')
                L.append(f's_add_u32 s44, s42, {ks*40960 + par*5120}')
                L.append(f'buffer_load_dwordx4 v{V1 if par else V0}, s[8:11], s44 offen lds')
        return L
    def reads(c):
        L = []
        slot = (c % RING) * KS * 8192
        for k in range(KS):
            ks = c * KS + k
            for h in range(2):
                for hh in range(2):
                    off = slot + k * 8192 + hh * 4096
                    base = TA[h] if off < 49152 else TA[2 + h]
                    o = off if off < 49152 else off - 49152
                    L.append(f'ds_read_b64_tr_b16 {g2_wreg2(2*ks+h, hh)}, v{base} offset:{o}')
        return L
    stage_W(p, 27, RING, dma, reads, 'w2c')

def e2_compute(Yreg, A, mu_src, out_pack):
    R = R2
    E = R.E
    mu, r, nb, t = E + 4, E + 5, E + 6, E + 8
    L = [f'v_mul_f32 v{mu}, {INV_D}, v{E}',
         f'v_mul_f32 v{t}, {INV_D}, v{E+1}',
         f'v_fma_f32 v{t}, -v{mu}, v{mu}, v{t}',
         f'v_add_f32 v{t}, {EPS}, v{t}',
         f'v_rsq_f32 v{r}, v{t}'] + unpack8(R.X, A) + [
         f'v_mul_f32 v{nb}, v{mu}, v{r}']
    for k in range(4):
        y0, y1, h0, h1 = E + 8, E + 9, E + 12, E + 13
        L += [f'v_lshlrev_b32 v{y0}, 16, v{Yreg[k]}',
              f'v_and_b32 v{y1}, 0xffff0000, v{Yreg[k]}',
              f'v_fma_f32 v{h0}, v{R.X+2*k}, v{r}, -v{nb}',
              f'v_fma_f32 v{h1}, v{R.X+2*k+1}, v{r}, -v{nb}',
              f'v_fmac_f32 v{R.X+2*k}, v{h0}, v{y0}',
              f'v_fmac_f32 v{R.X+2*k+1}, v{h1}, v{y1}']
    L += pack8(out_pack, R.X)
    return L

def g2_r0(p):
    R = R2
    YR = R.B
    for i in range(8):
        if i % 4 == 0:
            p(f"""
            s_lshl_b32 s26, s40, 7
            s_add_u32 s26, s26, {hex(FY + (i//4)*160*16)}
            v_and_b32 v{R.RA1}, 7, v1
            v_lshlrev_b32 v{R.RA1}, 4, v{R.RA1}
            """)
            poll_flags(p, R.FAV, R.RA1, 's26', 2)
        p(f"""
        s_add_u32 s30, s41, {16*i}
        s_mul_i32 s31, s30, 20480
        s_mul_i32 s32, s30, 5120
        s_add_u32 s33, s31, {hex(YF)}
        s_add_u32 s34, s32, {hex(ST0)}
        """)
        gather_block(p, R.E, R.ENTLD, 's34', R.T0, R.T1, 3)
        p(f'buffer_load_dwordx2 {v(YR,2)}, v{R.YOFF}, s[4:7], s33 offen sc1')
        p(f'buffer_load_dwordx2 {v(YR+2,2)}, v{R.YOFF}, s[4:7], s33 offen offset:512 sc1')
        p(f'ds_read_b128 {v(R.P,4)}, v{R.RES} offset:{4096*i}')
        p(gather_sum(R.E, R.T0))
        p(e2_compute([YR, YR+1, YR+2, YR+3], R.P, None, R.P))
        p(f"""
        s_lshl_b32 s35, s40, 10
        s_add_u32 s35, s35, s31
        s_add_u32 s35, s35, {hex(XF)}
        s_lshl_b32 s36, s40, 8
        s_add_u32 s36, s36, s32
        s_add_u32 s36, s36, {hex(STX)}
        """)
        p(f'buffer_store_dwordx4 {v(R.P,4)}, v{R.L16}, s[4:7], s35 offen sc1')
        p(f'ds_write_b128 v{R.RES}, {v(R.P,4)} offset:{4096*i}')
        p(partial_stats(R.X, R.EQ, R.EQ + 1, R.T0))
        p('s_waitcnt vmcnt(0)')
        p(f'buffer_store_dwordx4 {v(R.EQ,4)}, v{R.ENTST}, s[4:7], s36 offen sc1')


def bstream(NKS, tiles, RG, WE, DEL, mf, rd_cur, rd_nxt, slot_cur, bar_pre, lamax=99):
    n = NKS * tiles
    gb = (NKS - DEL) * tiles
    def place(LA0):
        posts = [[] for _ in range(n)]
        pre_bar = []
        g = 0
        for r in range(LA0, NKS):
            e = 0 if r - RG < 0 else (r - RG) * tiles + tiles - 1
            g = max(g, e)
            if g >= n: return None
            posts[g].append(rd_cur(r)); g += 1
        g = gb
        for r in range(LA0):
            e = (NKS + r - RG) * tiles + tiles - 1
            if e < gb and len(pre_bar) < 2:
                pre_bar.append(rd_nxt(r)); continue
            g = max(g, e)
            if g >= n: return None
            posts[g].append(rd_nxt(r)); g += 1
        return posts, pre_bar
    for LA0 in range(min(RG, NKS, lamax), 0, -1):
        res = place(LA0)
        if res: break
    posts, pre_bar = res
    main = []
    for ks in range(NKS):
        for t in range(tiles):
            k = ks * tiles + t
            pre = []
            if k == gb: pre += bar_pre + pre_bar
            if t == 0 and ks % WE == 0:
                pre.append(Touch(*[slot_cur(x) for x in range(ks, min(ks + WE, NKS))]))
            main.append((pre, mf(ks, t), posts[k]))
    return main, gb, LA0

def g2_loop(p):
    R = R2
    LAG = cfg.lag
    NKS, DEL, RG = 54, 2, 4
    SA, SFA, SST, SSG, SY, SX3, SSX, SO = 30, 31, 32, 33, 34, 35, 36, 37
    TA, TB = 26, 27
    srd(p, SRD_A, P_WS, 0x10000000)
    srd(p, SRD_B, P_OUT, T * D * 2)
    p(f"""
    s_mul_i32 s26, s41, 55296
    s_add_u32 s{SA}, s45, s26
    s_add_u32 s{SA}, s{SA}, {hex(ACT)}
    s_lshl_b32 s{SFA}, s41, 10
    s_add_u32 s{SFA}, s{SFA}, {hex(FA)}
    s_mul_i32 s26, s41, 5120
    s_lshl_b32 s27, s40, 8
    s_add_u32 s{SSG}, s26, {hex(ST2)}
    s_add_u32 s{SST}, s{SSG}, s27
    s_add_u32 s{SSX}, s26, s27
    s_add_u32 s{SSX}, s{SSX}, {hex(STX + 128*5120)}
    s_mul_i32 s{SO}, s41, 20480
    s_add_u32 s{SY}, s{SO}, {hex(YF)}
    s_lshl_b32 s27, s40, 10
    s_add_u32 s{SX3}, s{SO}, s27
    s_add_u32 s{SX3}, s{SX3}, {hex(XF + 128*20480)}
    """)
    SPF = 38
    p(f"""
    s_lshl_b32 s27, s39, 2
    s_add_u32 s27, s27, s{S_W}
    s_mul_i32 s27, s27, 2816
    s_add_u32 s{SPF}, s26, s27
    """.replace('s26', 's92'))  if False else None
    p(f"""
    s_mul_i32 s26, s41, 55296
    s_mul_i32 s27, s40, 2816
    s_add_u32 s{SPF}, s26, s27
    s_add_u32 s{SPF}, s{SPF}, {hex(ACT)}
    """)
    def pfetch(i):
        if not cfg.pf or i > 15: return []
        return [f'v_lshlrev_b32 v{R.T0}, 2, v{R.L16}', f's_add_u32 s{TB}, s{SPF}, {hex(i*16*55296)}', f's_mov_b32 m0, {G2_DUMMY}',
                f'buffer_load_dword v{R.T0}, s[4:7], s{TB} offen lds']
    for k in range(8): p(f'v_mov_b32 v{R.ACC[1]+k}, 0')
    def dma(i, srdn, t):
        L = [f's_add_u32 s{t}, s{SA}, {hex(i*16*55296)}']
        for g in range(4):
            L.append(f's_add_u32 m0, s45, {(i&1)*G2_ACTB + 4096*g}')
            for k in range(4 if g < 3 else 2):
                L.append(f'buffer_load_dwordx4 v{R.L16}, {srdn}, s{t} offen offset:{1024*k}{" sc1" if cfg.act_sc1 else ""} lds')
            if g < 3: L.append(f's_add_u32 s{t}, s{t}, 4096')
        return L
    def faload(i, t, dst=None):
        return [f's_add_u32 s{t}, s{SFA}, {i*16384}',
                f'buffer_load_dword v{dst or R.FAV}, v{R.FAOFF}, s[4:7], s{t} offen sc1']
    p(f's_mov_b32 s26, s{SFA}')
    poll_flags(p, R.T0, R.FAOFF, 's26', 6)
    p(dma(0, 's[4:7]', TA))
    for k in range(1, cfg.pf): p(pfetch(k))
    p(faload(1, TB))
    p('s_waitcnt vmcnt(0)')
    p('s_barrier')
    def base(buf): return R.L16B if buf else R.L16
    def slot(i, ks): return R.B + 4 * ((ks + 2 * i) % 4)
    def bread(i, ks): return f'ds_read_b128 {v(slot(i, ks), 4)}, v{base(i&1)} offset:{ks*1024}'
    def mf(i, ks, h):
        A = R.ACC[i & 1] + 4 * h
        return f'v_mfma_f32_16x16x32_bf16 {v(A,4)}, {g2_wreg(2*ks+h)}, {v(slot(i, ks),4)}, {"0" if ks == 0 else v(A, 4)}'

    def e1_out(j):
        A = R.ACC[j & 1]
        L = [f'ds_read_b128 {v(R.P,4)}, v{R.RES} offset:{4096*(j&7)}']
        if j < 8: L += [f's_add_u32 s{TA}, s{SST}, {j*16*5120}']
        else: L += [f's_add_u32 s{TA}, s{SO}, {(j-8)*16*20480}']
        L += [Touch(v(R.P, 4))]
        L += unpack8(R.X, R.P)
        L += [f'v_add_f32 v{R.X+k}, v{R.X+k}, v{A+k}' for k in range(8)]
        L += pack8(R.P, R.X)
        if j < 8:
            L += [f'ds_write_b128 v{R.RES}, {v(R.P,4)} offset:{4096*j}']
            L += partial_stats(R.X, R.EQ, R.EQ + 1, R.T0)
            L += [f'buffer_store_dwordx4 {v(R.EQ,4)}, v{R.ENTST}, s[4:7], s{TA} offen sc1 ;ta=80']
        else:
            L += [f'buffer_store_dwordx2 {v(R.P,2)}, v{R.QOFF}, s[12:15], s{TA} offen',
                  f'buffer_store_dwordx2 {v(R.P+2,2)}, v{R.QOFF}, s[12:15], s{TA} offen offset:32']
        return L
    def e3(j):
        return [f's_add_u32 s{TA}, s{SSX}, {j*16*5120}', WaitVM('x3st', skip=0),
                f'v_mov_b32 v{R.EQ}, v{R.S3}', f'v_mov_b32 v{R.EQ+1}, v{R.Q3}',
                f'buffer_store_dwordx4 {v(R.EQ,4)}, v{R.ENTST}, s[4:7], s{TA} offen sc1 ;ta=80']
    def e2chk(j):
        return [Touch(v(R.E + 16, 3))] + gather_check(R.E, R.T0, R.T1, 28) + [f's_cbranch_scc0 Lg2_e2late{j}', f'Lg2_e2ret{j}:']
    def e2(j):
        L = [f'ds_read_b128 {v(R.P,4)}, v{R.RES} offset:{4096*j}']
        L += gather_sum(R.E, R.T0)
        L += [f's_add_u32 s{TA}, s{SX3}, {j*16*20480}']
        L += e2_compute(R.YR, R.P, None, R.P)
        L += [f'buffer_store_dwordx4 {v(R.P,4)}, v{R.L16}, s[4:7], s{TA} offen sc1', Mark('x3st'),
              f'ds_write_b128 v{R.RES}, {v(R.P,4)} offset:{4096*j}']
        L += partial_stats(R.X, R.S3, R.Q3, R.T0)
        return L
    def gloads(j):
        L = [f's_add_u32 s{TA}, s{SSG}, {j*16*5120}', f's_add_u32 s{TB}, s{SY}, {j*16*20480}']
        L += gather_loads(R.E, R.ENTLD, f's{TA}')
        L += [f'buffer_load_dwordx2 {v(R.YR[0],2)}, v{R.YOFF}, s[4:7], s{TB} offen',
              f'buffer_load_dwordx2 {v(R.YR[2],2)}, v{R.YOFF}, s[4:7], s{TB} offen offset:512']
        return L
    for ks in range(4): p(bread(0, ks))
    lstamp_init(p)
    llog_init(p)
    late = []
    def e2late(j, tag):
        q = Prog()
        q(f'Lg2_e2late{j}:')
        q(llog_in())
        q(f's_add_u32 s92, s{SSG}, {j*16*5120}')
        gather_block(q, R.E, R.ENTLD, 's92', R.T0, R.T1, 7)
        q(llog_out(tag, R.X))
        q(f's_branch Lg2_e2ret{j}')
        late.append('\n'.join(finalize(q)))
    def chk(j):
        c = e2chk(j)
        return c[:-4] + [('atom', c[-4:])]
    def flat(L):
        o = []
        for x in L:
            if isinstance(x, tuple):
                if x[0] == 'atom': o += x[1]
            else: o.append(x)
        return o
    for i in range(16):
        lastb = i in (7, 15)
        bar = []
        if not lastb:
            bar += ['s_cmp_eq_u32 s10, 0', f's_cbranch_scc1 Lg2_falate{i}', f'Lg2_faret{i}:']
            bar += tstamp(i, 4) + cstamp_pre() + rstamp_pre() + [WaitVM('g2dma', skip=0, extra='lgkmcnt(0)')] + rstamp_post(64 + i) + tstamp(i, 5) + ['s_barrier'] + tstamp(i, 6)
            bar += cstamp_post_static(i, [0, 1, 4, 5, 7, 11, 12, 14])
        main, gb, LA0 = bstream(NKS, 2, RG, cfg.g2we, DEL, lambda ks, t: mf(i, ks, t), lambda r: bread(i, r),
                                (lambda r: bread(i + 1, r)) if not lastb else (lambda r: Mark('none')),
                                lambda ks: v(slot(i, ks), 4), bar)
        assert LA0 == 4
        sa = []
        if i < 15:
            sa += [('atom', [f'v_cmp_ne_u32 vcc, s{S_NONCE}, v{R.FAV}', 's_cmp_eq_u64 vcc, 0', 's_cselect_b32 s10, 0x10000000, 0'])]
            sa += pfetch(i + cfg.pf)[:1]
            sa += dma(i + 1, 's[8:11]', 42) + [Mark('g2dma')]
            sa += pfetch(i + cfg.pf)[1:]
        if i + 2 <= 15 and i != 7: sa += faload(i + 2, 43)
        fill = []
        if i >= 1 and i != 8: fill += e1_out(i - 1)
        j2 = i - LAG if i < 8 else -99
        if cfg.e2_at: fill += [('at', cfg.e2_at)]
        if 0 <= j2 < 8:
            c = chk(j2); fill += tstamp(i, 0) + c[:1] + tstamp(i, 1) + c[1:]
        if 0 <= j2 - 1 < 8:
            c = e3(j2 - 1); fill += tstamp(i, 2) + c[:2] + tstamp(i, 3) + c[2:]
        if 0 <= j2 < 8: fill += e2(j2)
        if cfg.gl_at: fill += [('at', cfg.gl_at)]
        if 0 <= j2 + 1 < 8: fill += gloads(j2 + 1)
        def keep(x):
            if not isinstance(x, str): return True
            op = x.split()[0]
            if 'dma' in cfg.g2x and op.startswith('buffer_load') and ' lds' in x: return False
            if 'gat' in cfg.g2x and op.startswith('buffer_load_dwordx3'): return False
            if 'yld' in cfg.g2x and op.startswith('buffer_load_dwordx2'): return False
            if 'ost' in cfg.g2x and op.startswith('buffer_store_dwordx2'): return False
            if 'val' in cfg.g2x and op.startswith('v_') and not op.startswith(('v_cmp', 'v_min3', 'v_max3', 'v_add_u32')): return False
            return True
        fill = [x for x in fill if keep(x)]
        sa = [x for x in sa if keep(x)]
        dbg = []
        p(sched2(main, [(sa, True), (fill, False)], last=gb - 1, backlog=cfg.bkl, debug=dbg, bfirst=(i <= 8)))
        if cfg.verbose: print('G2 body', i, 'est', sum(max(16, 8 + x) for x in dbg), dbg)
        if 0 <= j2 < 8: e2late(j2, 0x100 + i)
        if i < 15:
            q = Prog()
            q(f'Lg2_falate{i}:')
            q(llog_in())
            q(f's_add_u32 s92, s{SFA}, {(i+1)*16384}')
            poll_flags(q, R.FAV, R.FAOFF, 's92', 8)
            q(llog_out(0x200 + i, R.X))
            q(dma(i + 1, 's[4:7]', 93))
            if i + 2 <= 15 and i != 7: q(faload(i + 2, 92))
            q('s_waitcnt vmcnt(0)')
            q(f's_branch Lg2_faret{i}')
            late.append('\n'.join(finalize(q)))
        if i == 7:
            assert LAG == 2
            p(rstamp_pre() + ['s_waitcnt lgkmcnt(0)'] * bool(rstamp_pre()) + rstamp_post(64 + 7))
            p('s_nop 7')
            p(e1_out(7))
            p(flat(chk(6))); e2late(6, 0x108)
            p(e3(5))
            p(e2(6))
            p(gloads(7))
            p(e3(6))
            p(flat(chk(7))); e2late(7, 0x109)
            p(e2(7))
            p(e3(7))
            p('s_cmp_eq_u32 s10, 0')
            p('s_cbranch_scc1 Lg2_falate7')
            p('Lg2_faret7:')
            p(faload(9, 43))
            p(WaitVM('g2dma', skip=0))
            p('s_barrier')
            for ks in range(4): p(bread(8, ks))
    p('s_nop 7')
    p(e1_out(15))
    p('s_waitcnt vmcnt(0)')
    p('s_branch Lg2_done')
    for t in late: p.raw(t)
    p('Lg2_done:')

class R1:
    L16, ENTLD, STOFF, FLOFF = 2, 3, 4, 5
    T0, T1 = 6, 7
    B = 8
    ACC = [24, 40, 56]
    CS = 72
    ST = [88, 92, 96]
    E = 100
    EP = 120
    O = 152
def g1_wreg(f): return a(4 * f, 4) if f < 64 else v(192 + 4 * (f - 64), 4)
def g1_wreg2(f, hh): return a(4 * f + 2 * hh, 2) if f < 64 else v(192 + 4 * (f - 64) + 2 * hh, 2)
XBUF = 20480
S_BETA = [45, 46, 47]

def g1_setup(p):
    p(f"""
    s_mul_i32 s26, s{S_SLOT}, 37
    s_lshr_b32 s37, s26, 8
    s_mul_i32 s26, s37, 7
    s_sub_u32 s38, s{S_SLOT}, s26
    s_mul_i32 s26, s{S_HALF}, 7
    s_add_u32 s38, s38, s26
    s_lshl_b32 s39, s38, 2
    s_add_u32 s39, s39, s{S_W}
    s_cmp_eq_u32 s37, 2
    s_cselect_b32 s40, 10, 11
    s_lshl_b32 s41, s37, 2
    s_add_u32 s41, s41, s{S_GRP}
    """)

def g1_stage_w(p):
    srd(p, SRD_A, P_WG, D * F * 2)
    srd(p, SRD_B, P_WU, D * F * 2)
    V0, V1, TA = 24, 25, [26, 27, 28, 29]
    p(f's_lshl_b32 s26, s38, 8')
    wdma_voff(p, V0, V1, 3456, 26)
    for h in range(2):
        p(f's_lshl_b32 s27, s{S_W}, 1')
        p(f's_add_u32 s27, s27, {h}')
        wtr_addr(p, TA[h], 27)
        p(f'v_add_u32 v{TA[2+h]}, 65536, v{TA[h]}') if False else p(f'v_add_u32 v{TA[2+h]}, 0x10000, v{TA[h]}')
    p(f's_mul_i32 s30, s{S_W}, {2*13824}')
    p(f's_lshl_b32 s31, s{S_W}, 11')
    RING = 8
    def dma(c):
        L = []
        slot = (c % RING) * 16384
        for mat in range(2):
            for par in range(2):
                L.append(f's_add_u32 m0, s31, {slot + mat*8192 + par*1024}')
                L.append(f's_add_u32 s35, s30, {c*110592 + par*13824}')
                L.append(f'buffer_load_dwordx4 v{V1 if par else V0}, s[{8+4*mat}:{11+4*mat}], s35 offen lds')
        return L
    def reads(c):
        L = []
        slot = (c % RING) * 16384
        for mat in range(2):
            for h in range(2):
                for hh in range(2):
                    off = slot + mat * 8192 + hh * 4096
                    base = TA[h] if off < 65536 else TA[2 + h]
                    o = off if off < 65536 else off - 65536
                    L.append(f'ds_read_b64_tr_b16 {g1_wreg2(4*c + 2*mat + h, hh)}, v{base} offset:{o}')
        return L
    stage_W(p, 20, RING, dma, reads, 'w1c')
    R = R1
    for k in range(4): p(f'v_mov_b32 v{R.B+k}, 0x3f803f80')
    for ks in range(20):
        for t in range(4):
            c = '0' if ks == 0 else v(R.CS + 4 * t, 4)
            p(f'v_mfma_f32_16x16x32_bf16 {v(R.CS+4*t,4)}, {g1_wreg(4*ks+t)}, {v(R.B,4)}, {c}')

def g1_stats(slot):
    R = R1
    E = R.E; S = R.ST[slot]
    return gather_sum(E, R.T0) + [
        f'v_mul_f32 v{E+4}, {INV_D}, v{E}',
        f'v_mul_f32 v{E+5}, {INV_D}, v{E+1}',
        f'v_fma_f32 v{E+5}, -v{E+4}, v{E+4}, v{E+5}',
        f'v_add_f32 v{S+2}, {EPS}, v{E+5}',
        f'v_rsq_f32 v{E+6}, v{S+2}',
        f'v_sub_f32 v{S}, 0, v{E+4}',
        f'v_mul_f32 v{S+1}, 0xbfb8aa3b, v{E+6}']

def g1_xdma(slot, srdn, sx):
    sc = " sc1" if cfg.x_sc1 else ""
    return [f's_add_u32 m0, s31, {slot*XBUF}', f's_add_u32 s35, s{sx}, 4096'] + \
           [f'buffer_load_dwordx4 v{R1.L16}, {srdn}, s{sx} offen offset:{1024*i}{sc} lds' for i in range(4)] + \
           [f's_add_u32 m0, s31, {slot*XBUF + 4096}',
            f'buffer_load_dwordx4 v{R1.L16}, {srdn}, s35 offen{sc} lds']

def g1_epilogue(setk, stk):
    R = R1
    A = R.ACC[setk]; S = R.ST[stk]
    L = []
    tmp = R.EP
    for h in range(2):
        for e in range(4):
            j = 4 * h + e
            g, u = tmp + j, tmp + 8 + j
            L.append(f'v_fma_f32 v{g}, v{S}, v{R.CS+4*h+e}, v{A+4*h+e}')
            L.append(f'v_fma_f32 v{u}, v{S}, v{R.CS+8+4*h+e}, v{A+8+4*h+e}')
    for j in range(8): L.append(f'v_mul_f32 v{tmp+16+j}, v{tmp+j}, v{S+1}')
    for j in range(8): L.append(f'v_exp_f32 v{tmp+16+j}, v{tmp+16+j}')
    for j in range(8): L.append(f'v_mul_f32 v{tmp+j}, v{tmp+j}, v{tmp+8+j}')
    for j in range(8): L.append(f'v_fma_f32 v{tmp+16+j}, v{tmp+16+j}, v{S+2}, v{S+2}')
    for j in range(8): L.append(f'v_rcp_f32 v{tmp+16+j}, v{tmp+16+j}')
    for j in range(8): L.append(f'v_mul_f32 v{tmp+j}, v{tmp+j}, v{tmp+16+j}')
    L += pack8(R.O, tmp)
    return L

def g1_loop(p):
    R = R1
    NKS, DEL, RG = 20, 2, 10
    sPS, sPX, sNP, sNC, sLY = 42, 43, 44, 34, 36
    sA0, sA1, sF0, sF1, sF2 = 45, 46, 47, 32, 33
    NV = 181
    STEP = 12
    p(f"""
    v_lshlrev_b32 v{R.L16}, 4, v1
    v_and_b32 v20, 15, v1
    v_lshrrev_b32 v21, 4, v1
    v_mul_u32_u24 v{R.ENTLD}, 1280, v21
    v_lshl_add_u32 v{R.ENTLD}, v20, 4, v{R.ENTLD}
    s_cmp_lt_u32 s39, 54
    s_cselect_b32 s26, 0, {hex(OOB)}
    v_add_u32 v{R.STOFF}, s26, v{R.L16}
    v_mov_b32 v22, {hex(OOB)}
    v_mov_b32 v23, s26
    v_cmp_eq_u32 vcc, 0, v1
    v_mov_b32 v{NV}, s{S_NONCE}
    v_cndmask_b32 v{R.FLOFF}, v22, v23, vcc
    s_mul_i32 s31, s{S_W}, 5120
    s_mov_b32 s{sLY}, 0
    """)
    srd(p, SRD_A, P_WS, 0x10000000)
    llog_init(p)
    if cfg.lprof == 5:
        p('s_mov_b32 s100, 0'); p('v_mov_b32 v180, 0')
    def slot(ks):
        r = ks % RG
        return R.B + 4 * r if r < 4 else 156 + 4 * (r - 4)
    def bread(buf, ks): return f'ds_read_b128 {v(slot(ks), 4)}, v{R.L16} offset:{buf*XBUF + ks*1024}'
    def mf(setk, ks, t):
        c = '0' if ks == 0 else v(R.ACC[setk] + 4 * t, 4)
        return f'v_mfma_f32_16x16x32_bf16 {v(R.ACC[setk]+4*t,4)}, {g1_wreg(4*ks+t)}, {v(slot(ks),4)}, {c}'
    def flagstore(sf): return [f'buffer_store_dword v{NV}, v{R.FLOFF}, s[4:7], s{sf} offen sc1']
    def actstore(): return [f'buffer_store_dwordx4 {v(R.O,4)}, v{R.STOFF}, s[4:7], s{sA0} offen sc1']
    p('Lg1_layer:')
    p(f"""
    s_lshl_b32 s26, s{sLY}, 7
    s_add_u32 s26, s26, s41
    s_mul_i32 s{sPS}, s26, 5120
    s_add_u32 s{sPS}, s{sPS}, {hex(STX)}
    s_mul_i32 s{sPX}, s26, 20480
    s_add_u32 s{sPX}, s{sPX}, s31
    s_add_u32 s{sPX}, s{sPX}, {hex(XF)}
    s_mul_i32 s{sA1}, s26, 55296
    s_lshl_b32 s27, s39, 10
    s_add_u32 s{sA1}, s{sA1}, s27
    s_add_u32 s{sA1}, s{sA1}, {hex(ACT)}
    s_lshl_b32 s{sF0}, s26, 10
    s_lshl_b32 s27, s39, 4
    s_add_u32 s{sF0}, s{sF0}, s27
    s_add_u32 s{sF0}, s{sF0}, {hex(FA)}
    s_mov_b32 s{sA0}, {hex(OOB)}
    s_mov_b32 s{sF1}, {hex(OOB)}
    s_mov_b32 s{sF2}, {hex(OOB)}
    s_sub_u32 s{sNP}, s40, 2
    s_mov_b32 s{sNC}, s40
    """)
    q = Prog()
    for k in range(2):
        if k == 0: q(llog_in())
        gather_block(q, R.E, R.ENTLD, f's{sPS}', R.T0, R.T1, 4)
        if k == 0: q(llog_out('0x300', R.EP))
        q(g1_stats(k))
        q(g1_xdma(k, 's[4:7]', sPX))
        q(f's_add_u32 s{sPS}, s{sPS}, {STEP*5120}')
        q(f's_add_u32 s{sPX}, s{sPX}, {STEP*20480}')
    q('s_barrier')
    p.raw('\n'.join(finalize(q)))
    main0, gb, LA0 = bstream(NKS, 4, RG, cfg.g1we, DEL, lambda ks, t: mf(0, ks, t), lambda r: bread(0, r), lambda r: bread(1, r),
                             lambda ks: v(slot(ks), 4), [], lamax=cfg.g1la)
    for k in range(5): p(f'buffer_load_dword v{R.T0}, v{R.L16}, s[4:7], s{sPX} offen') if False else None
    p.mark('g1end')
    for ks in range(LA0): p(bread(0, ks))
    p.begin_loop()
    p('Lg1_loop:')
    for k in range(3):
        prev = nxt2 = (k + 2) % 3
        nx = (k + 1) % 3
        bar = []
        if cfg.lprof == 5: bar += ['s_memrealtime s[58:59]']
        bar += [WaitVM('g1end', skip=0, extra='lgkmcnt(0)' if cfg.lprof == 5 else '')]
        if cfg.lprof == 5: bar += ['s_lshl_b64 exec, 1, s100', 'v_mov_b32 v180, s58', 's_mov_b64 exec, -1', 's_add_u32 s100, s100, 1']
        bar += ['s_barrier']
        main, gb, LA0 = bstream(NKS, 4, RG, cfg.g1we, DEL, lambda ks, t: mf(k, ks, t), lambda r: bread(k, r), lambda r: bread(nx, r),
                                lambda ks: v(slot(ks), 4), bar, lamax=cfg.g1la)
        sa = gather_loads(R.E, R.ENTLD, f's{sPS}')
        ep = g1_epilogue(prev, prev)
        n1 = cfg.g1fl
        fill = ep[:n1] + [WaitVM('g1act', skip=0)] + flagstore(sF2) + ep[n1:]
        fill += actstore() + [Mark('g1act')]
        fill += [f's_mov_b32 s{sA0}, s{sA1}', f's_add_u32 s{sA1}, s{sA1}, {STEP*55296}',
                 f's_mov_b32 s{sF2}, s{sF1}', f's_mov_b32 s{sF1}, s{sF0}', f's_add_u32 s{sF0}, s{sF0}, {STEP*1024}']
        if cfg.g1chk: fill += [('at', cfg.g1chk)]
        c = gather_check(R.E, R.T0, R.T1, 28)
        fill += [Touch(v(R.E + 16, 3))] + c[:-2]
        fill += [('atom', c[-2:] + ['s_cselect_b32 s10, 0x10000000, 0', f's_cselect_b32 s25, 0, s{sNP}',
                                   f's_cmp_gt_i32 s{sNP}, 0', 's_cselect_b32 s10, s10, 0'])]
        fill += g1_stats(nxt2)
        fill += g1_xdma(nxt2, 's[8:11]', sPX)
        fill += [f's_add_u32 s{sPS}, s{sPS}, {STEP*5120}', f's_add_u32 s{sPX}, s{sPX}, {STEP*20480}', f's_sub_u32 s{sNP}, s{sNP}, 1']
        def keep1(x):
            if not isinstance(x, str): return True
            op = x.split()[0]
            if 'dma' in cfg.g1x and op.startswith('buffer_load') and ' lds' in x: return False
            if 'val' in cfg.g1x and op.startswith('v_') and not op.startswith(('v_cmp', 'v_min3', 'v_max3', 'v_add_u32')): return False
            return True
        fill = [x for x in fill if keep1(x)]
        dbg = []
        p(sched2(main, [(sa, True), (fill, False)], last=gb - 1, backlog=cfg.g1bkl, debug=dbg))
        if cfg.verbose: print('G1 body', k, 'est', sum(max(16, 8 + x) for x in dbg), dbg)
        p('s_cmp_gt_i32 s25, 0')
        p(f's_cbranch_scc1 Lg1_late{k}')
        p(f'Lg1_ret{k}:')
        p.mark('g1end')
        p(f's_sub_u32 s{sNC}, s{sNC}, 1')
        p(f's_cmp_eq_u32 s{sNC}, 0')
        p(f's_cbranch_scc1 Lg1_tail{k}')
    p('s_branch Lg1_loop')
    p.end_loop(times=3)
    for k in range(3):
        nxt2 = (k + 2) % 3
        q = Prog()
        q(f'Lg1_late{k}:')
        q(llog_in())
        q('s_waitcnt vmcnt(0)')
        q(flagstore(sF2))
        q(f's_sub_u32 s30, s{sPS}, {STEP*5120}')
        q(f's_sub_u32 s27, s{sPX}, {STEP*20480}')
        gather_block(q, R.E, R.ENTLD, 's30', R.T0, R.T1, 5)
        q(llog_out('s30', R.EP))
        q(g1_stats(nxt2))
        q(g1_xdma(nxt2, 's[4:7]', 27))
        q(f's_branch Lg1_ret{k}')
        p.raw('\n'.join(finalize(q)))
    for k in range(3):
        q = Prog()
        q(f'Lg1_tail{k}:')
        q('s_waitcnt vmcnt(0)')
        q(flagstore(sF2))
        q('s_nop 7')
        q(g1_epilogue(k, k))
        q(actstore())
        q('s_waitcnt vmcnt(0)')
        q(flagstore(sF1))
        q(f's_add_u32 s{sLY}, s{sLY}, 1')
        q(f's_cmp_lt_u32 s{sLY}, {cfg.layers}')
        q('s_cbranch_scc1 Lg1_layer')
        q('s_branch Lg1_done')
        p.raw('\n'.join(finalize(q)))
    p('Lg1_done:')
    if cfg.lprof == 5:
        p(f"""
        s_lshl_b32 s26, s{S_WG}, 2
        s_add_u32 s26, s26, s{S_W}
        s_lshl_b32 s26, s26, 8
        s_add_u32 s26, s26, {hex(PROF2 + 0x800000)}
        v_and_b32 v2, 63, v0
        v_lshlrev_b32 v2, 2, v2
        s_nop 1
        buffer_store_dword v180, v2, s[4:7], s26 offen
        """)

def build():
    p = Prog()
    prologue(p)
    stamp(p, 0)
    stage_P(p)
    stamp(p, 1)
    if cfg.stop_after == 'P':
        flush_stamps(p, 6)
        p('s_branch Lfin')
    p(f'''
    s_cmp_ge_u32 s{S_SLOT}, 21
    s_cbranch_scc1 Lrole_g2
    s_mul_i32 s37, s{S_XCD}, 21
    s_add_u32 s37, s37, s{S_SLOT}
    s_cmp_ge_u32 s37, 160
    s_cbranch_scc1 Lconv_done
    s_lshl_b32 s38, s37, 2
    s_add_u32 s38, s38, s{S_W}
    ''')
    conv_prep_H(p)
    conv_main(p)
    p('Lconv_done:')
    if cfg.stop_after not in ('conv', 'front'):
        p('s_barrier')
        g1_setup(p)
        g1_stage_w(p)
        stamp(p, 6)
        g1_loop(p)
        stamp(p, 7)
    flush_stamps(p, 8)
    cstamp_flush(p)
    p('s_branch Lfin')
    p('Lrole_g2:')
    p(f's_cmp_eq_u32 s{S_SLOT}, 31')
    p('s_cbranch_scc1 Lfin')
    g2_setup(p)
    g2_qprep(p)
    stamp(p, 2)
    if cfg.stop_after != 'front_now':
        g2_stage_w(p)
    stamp(p, 3)
    g2_r0(p)
    stamp(p, 4)
    if cfg.stop_after not in ('front', 'g1'):
        g2_loop(p)
    stamp(p, 5)
    flush_stamps(p, 6)
    cstamp_flush(p)
    rstamp_flush(p, 16)
    tstamp_flush(p)
    p('Lfin:')
    p(f'''
    s_cmp_lg_u32 s2, 0
    s_cbranch_scc1 Lend
    s_cmp_lg_u32 s{S_W}, 0
    s_cbranch_scc1 Lend
    s_mov_b32 s26, {hex(NONCE)}
    v_mov_b32 v2, s{S_NONCE}
    v_mov_b32 v3, 0
    s_mov_b64 exec, 1
    buffer_store_dword v2, v3, s[4:7], s26 offen sc1
    ''')
    p('Lend:')
    lines = finalize(p)
    return lines

HDR = open('interleave_layers__ssm_conv_h3__swiglu_ffn__prompt.s.ref').read().split('; Override')[0] \
    if __import__('os').path.exists('interleave_layers__ssm_conv_h3__swiglu_ffn__prompt.s.ref') else ''

def wrap(lines):
    body = '\n'.join(lines)
    return f'''{HDR}; @launch grid=(256,1,1) block=(256,1,1) lds=163840
.amdgcn_target "amdgcn-amd-amdhsa--gfx950"
.text
.globl {KNAME}
.p2align 8
.type {KNAME},@function
{KNAME}:
{body}
s_endpgm
.section .rodata,"a"
.p2align 6
.amdhsa_kernel {KNAME}
  .amdhsa_next_free_vgpr 512
  .amdhsa_next_free_sgpr 102
  .amdhsa_accum_offset 256
  .amdhsa_group_segment_fixed_size 0
  .amdhsa_kernarg_size 104
  .amdhsa_user_sgpr_count 2
  .amdhsa_user_sgpr_kernarg_segment_ptr 1
  .amdhsa_system_sgpr_workgroup_id_x 1
.end_amdhsa_kernel
'''

if __name__ == '__main__':
    out = sys.argv[1]
    for arg in sys.argv[2:]:
        k, val = arg.split('=')
        setattr(cfg, k, {'True': True, 'False': False, 'None': None}.get(val, int(val) if val.isdigit() else val))
    open(out, 'w').write(wrap(build()))
```
